```python
import torch

def _softmax(x, axis=-1):
    return torch.softmax(x, dim=axis)
def _gelu(x):
    return torch.nn.functional.gelu(x, approximate="tanh")
def _silu(x):
    return torch.nn.functional.silu(x)
def _sigmoid(x):
    return torch.sigmoid(x)
def _layernorm(x, axis=-1, eps=1e-5):
    m = x.mean(dim=axis, keepdim=True)
    v = x.var(dim=axis, keepdim=True, unbiased=False)
    return (x - m) / torch.sqrt(v + eps)
def _scatter_add(tgt, idx, src, axis=0):
    return tgt.clone().index_add_(axis, idx, src)
def _segment_sum(src, seg, n):
    out = torch.zeros((n,) + src.shape[1:], dtype=src.dtype)
    return out.index_add_(0, seg, src)
def _pad(x, pw):
    flat = tuple(v for pair in reversed(pw) for v in pair)
    return torch.nn.functional.pad(x, flat)

kernel_name = 'recurrent_scan__gqa_block_cached__glu_gated_geglu__decode'

def setup_inputs():

    _w = (lambda a: (lambda t: t.to(torch.bfloat16) if t.is_floating_point() else t)(torch.as_tensor(a)))
    def _A_setup():
        B, Sq, D = 2, 1, 512
        Hq, Hkv, Sk, Dh = 32, 8, 32768, 128
        assert Hq % Hkv == 0, (Hq, Hkv)
        return {
            "x": _w((lambda *s: torch.randn(*s, dtype=torch.bfloat16) * 0.4)(B, Sq, D)),
            "k_cache": _w((lambda *s: torch.randn(*s, dtype=torch.bfloat16) * 1.6)(B, Hkv, Sk, Dh)),
            "v_cache": _w((lambda *s: torch.randn(*s, dtype=torch.bfloat16) * 1.6)(B, Hkv, Sk, Dh)),
            "wq": _w((lambda *s: torch.randn(*s, dtype=torch.bfloat16) * 1.6)(D, Hq * Dh) * (D ** -0.5)),
            "wo": _w((lambda *s: torch.randn(*s, dtype=torch.bfloat16) * 1.6)(Hq * Dh, D) * ((Hq * Dh) ** -0.5)),
        }
    _A_in = _A_setup()

    def _B_setup():
        B, S, Dm, Df = 2, 1, 512, 1792
        return {
            "x": _w((lambda *s: torch.randn(*s, dtype=torch.bfloat16) * 0.4)(B, S, Dm)),
            "w_gate": _w((lambda *s: torch.randn(*s, dtype=torch.bfloat16) * 1.6)(Dm, Df) * (Dm ** -0.5)),
            "w_up": _w((lambda *s: torch.randn(*s, dtype=torch.bfloat16) * 1.6)(Dm, Df) * (Dm ** -0.5)),
            "w_down": _w((lambda *s: torch.randn(*s, dtype=torch.bfloat16) * 1.6)(Df, Dm) * (Df ** -0.5)),
        }
    _B_in = _B_setup()

    return {
        "A_x": _A_in["x"],
        "A_k_cache": _A_in["k_cache"],
        "A_v_cache": _A_in["v_cache"],
        "A_wq": _A_in["wq"],
        "A_wo": _A_in["wo"],
        "B_x": _B_in["x"],
        "B_w_gate": _B_in["w_gate"],
        "B_w_up": _B_in["w_up"],
        "B_w_down": _B_in["w_down"],
    }

def reference(A_x, A_k_cache, A_v_cache, A_wq, A_wo, B_x, B_w_gate, B_w_up, B_w_down):
    def _A_ref(x, k_cache, v_cache, wq, wo):
        B, Sq, D = x.shape
        Hq, Dh = 32, 128
        Hkv = k_cache.shape[1]
        rep = Hq // Hkv
        q = (lambda x, *d: x.permute(*d))((x @ wq).reshape(B, Sq, Hq, Dh), 0, 2, 1, 3)
        k = (lambda x, n, axis: torch.repeat_interleave(x, n, dim=axis))(k_cache, rep, axis=1)
        v = (lambda x, n, axis: torch.repeat_interleave(x, n, dim=axis))(v_cache, rep, axis=1)
        scores = torch.einsum("bhqd,bhkd->bhqk", q, k) * (Dh ** -0.5)
        p = _softmax(scores, axis=-1)
        o = torch.einsum("bhqk,bhkd->bhqd", p, v)
        return (lambda x, *d: x.permute(*d))(o, 0, 2, 1, 3).reshape(B, Sq, Hq * Dh) @ wo

    def _B_ref(x, w_gate, w_up, w_down):
        g = torch.einsum("bsd,df->bsf", x, w_gate)
        u = torch.einsum("bsd,df->bsf", x, w_up)
        h = _gelu(g) * u
        return torch.einsum("bsf,fd->bsd", h, w_down)

    x = A_x
    xn = _layernorm(x, axis=-1)
    s = _A_ref(xn, A_k_cache, A_v_cache, A_wq, A_wo)
    g = _silu(_B_ref(xn, B_w_gate, B_w_up, B_w_down))
    return x + s * g
```

```python
import re

TRANS = ("v_exp_f32", "v_log_f32", "v_rcp_f32", "v_rsq_f32", "v_sqrt_f32", "v_sin_f32", "v_cos_f32")

def regs_of(tok):
    tok = tok.strip()
    tok = tok.lstrip("-")
    m = re.fullmatch(r"abs\((.*)\)", tok)
    if m: tok = m.group(1)
    tok = tok.strip("|")
    m = re.fullmatch(r"([vs])(\d+)", tok)
    if m: return {(m.group(1), int(m.group(2)))}
    m = re.fullmatch(r"([vs])\[(\d+):(\d+)\]", tok)
    if m: return {(m.group(1), i) for i in range(int(m.group(2)), int(m.group(3)) + 1)}
    if tok == "vcc": return {("s", "vcc")}
    if tok in ("vcc_lo", "vcc_hi"): return {("s", "vcc")}
    if tok in ("exec", "exec_lo", "exec_hi"): return {("s", "exec")}
    if tok == "m0": return {("s", "m0")}
    return set()

def split_ops(rest):
    ops, depth, cur = [], 0, ""
    for ch in rest:
        if ch in "[(": depth += 1
        if ch in "])": depth -= 1
        if ch == "," and depth == 0:
            ops.append(cur.strip()); cur = ""
        else:
            cur += ch
    if cur.strip(): ops.append(cur.strip())
    mods = ""
    if ops:
        parts = ops[-1].split(None, 1)
        ops[-1] = parts[0]
        if len(parts) > 1: mods = parts[1]
    return ops, mods

class Ins:
    def __init__(self, text):
        self.text = text
        t = text.split(";")[0].strip()
        self.label = None
        self.mn = None
        if t.endswith(":"):
            self.label = t[:-1]; return
        if not t or t.startswith("."):
            return
        p = t.split(None, 1)
        self.mn = mn = p[0]
        ops, mods = split_ops(p[1]) if len(p) > 1 else ([], "")
        self.ops, self.mods = ops, mods
        R = [regs_of(o) for o in ops]
        allr = set().union(*R) if R else set()
        self.w, self.r = set(), set()
        self.valu = mn.startswith("v_") and not mn.startswith("v_mfma")
        self.mfma = mn.startswith("v_mfma")
        self.trans = mn.replace("_e32", "").replace("_e64", "") in TRANS
        self.dpp = "dpp" in mn or "row_" in mods or "quad_perm" in mods
        self.perml = mn.startswith("v_permlane")
        self.rdlane = mn.startswith("v_readlane") or mn.startswith("v_readfirstlane")
        self.vmem = mn.startswith(("buffer_", "global_", "flat_"))
        self.ds = mn.startswith("ds_")
        self.wide_store_data = set()
        self.A = self.B = self.C = set()
        self.states = 1
        self.target = None
        self.uncond = False
        if mn == "s_nop":
            self.states = int(ops[0], 0) + 1
        if mn.startswith("s_cbranch") or mn == "s_branch":
            self.target = ops[0]
            self.uncond = mn == "s_branch"
        if mn == "s_endpgm": self.uncond = True
        if self.mfma:
            self.w = R[0]; self.A, self.B, self.C = R[1], R[2], R[3]; self.r = R[1] | R[2] | R[3]
            self.passes = 4 if "16x16x32" in mn or "16x16x16" in mn else 8
            assert "bf16" in mn or "f16" in mn
        elif self.perml:
            self.w = allr; self.r = allr
        elif self.valu:
            if mn.startswith(("v_add_co", "v_sub_co", "v_addc_co", "v_subb_co", "v_subrev_co")):
                self.w = R[0] | R[1]; self.r = set().union(*R[2:])
            else:
                self.w = R[0]; self.r = set().union(*R[1:]) if len(R) > 1 else set()
            if mn.startswith(("v_fmac", "v_dot2c", "v_pk_fmac", "v_writelane")) or self.dpp:
                self.r |= R[0]
            if mn.startswith("v_cndmask") and len(ops) == 3:
                self.r |= {("s", "vcc")}
            assert not mn.startswith("v_cmpx"), "avoid v_cmpx"
        elif self.vmem:
            if mn in ("buffer_wbl2", "buffer_inv"):
                pass
            elif "_load" in mn:
                if "lds" in mods.split() or "_lds_" in mn:
                    self.r = allr | {("s", "m0")}
                else:
                    self.w = R[0]; self.r = set().union(*R[1:])
            elif "_store" in mn:
                self.r = allr
                if "x4" in mn or "x3" in mn:
                    self.wide_store_data = R[0] if mn.startswith("buffer") else R[1]
            elif "_atomic" in mn:
                self.r = allr
                if "sc0" in mods.split():
                    self.w = R[0]
                    if mn.startswith("global"): self.r = set().union(*R[1:])
        elif self.ds:
            if mn.startswith(("ds_read", "ds_bpermute", "ds_permute", "ds_swizzle")) or "_rtn" in mn:
                self.w = R[0]; self.r = set().union(*R[1:])
            else:
                self.r = allr
        elif mn.startswith("s_"):
            if mn.startswith(("s_cmp", "s_cbranch", "s_branch", "s_waitcnt", "s_nop", "s_barrier", "s_endpgm", "s_sleep",
                              "s_setprio", "s_bitcmp")):
                self.r = allr
            else:
                self.w = R[0] if R else set(); self.r = set().union(*R[1:]) if len(R) > 1 else set()
                if "saveexec" in mn: self.w |= {("s", "exec")}

def need(p, c):
    n = 0
    vw = {x for x in p.w if x[0] == "v"}
    sw = {x for x in p.w if x[0] == "s"}
    if p.valu:
        if c.mfma and vw & c.r: n = max(n, 2)
        if c.dpp and vw & c.r: n = max(n, 2)
        if c.perml and vw & c.r: n = max(n, 2)
        if c.rdlane and vw & c.r: n = max(n, 1)
        if p.trans and c.valu and not c.trans and vw & c.r: n = max(n, 1)
        if p.trans and c.valu and c.trans and vw & c.r: n = max(n, 1)
        if sw:
            if c.valu and sw & c.r: n = max(n, 4 if (c.rdlane or c.mn.startswith("v_writelane")) else 2)
            if c.vmem and sw & c.r: n = max(n, 5)
            if c.mn and c.mn.startswith("s_") and sw & c.r: n = max(n, 1)
    if p.mfma:
        big = {4: 8, 8: 12}[p.passes]
        if c.mfma:
            if p.w & (c.A | c.B): n = max(n, big)
            if p.w & c.C:
                if p.w == c.C and p.passes == c.passes: pass
                else: n = max(n, {4: 6, 8: 10}[p.passes])
            elif p.w & c.w: n = max(n, big)
        elif c.valu:
            if p.w & (c.r | c.w): n = max(n, big)
            if p.C & c.w: n = max(n, {4: 3, 8: 7}[p.passes])
        elif c.vmem or c.ds:
            if p.w & (c.r | c.w): n = max(n, big)
    if p.wide_store_data:
        if c.valu and p.wide_store_data & c.w: n = max(n, 2)
        elif p.wide_store_data & c.w: n = max(n, 1)
    if p.mn and p.mn.startswith("s_") and ("s", "m0") in p.w:
        if c.vmem and ("s", "m0") in c.r: n = max(n, 1)
    return n

def fix_hazards(lines, maxd=13):
    ins = [Ins(l) for l in lines]
    changed = True
    total = 0
    while changed:
        changed = False
        labels = {x.label: i for i, x in enumerate(ins) if x.label}
        srcs = {}
        for i, x in enumerate(ins):
            if x.mn and x.target: srcs.setdefault(labels[x.target], []).append(i)
        for i, c in enumerate(ins):
            if not c.mn: continue
            if not (c.valu or c.mfma or c.vmem or c.ds or c.mn.startswith("s_")): continue
            worst = 0
            stack = [(i - 1, 0, True)]
            seen = set()
            while stack:
                j, d, fall = stack.pop()
                while j >= 0 and d < maxd:
                    if (j, d) in seen: break
                    seen.add((j, d))
                    x = ins[j]
                    if x.label:
                        for s in srcs.get(j, []):
                            stack.append((s, d, False))
                        j -= 1; fall = True; continue
                    if not x.mn:
                        j -= 1; continue
                    if x.uncond and fall:
                        break
                    n = need(x, c)
                    if n - d > worst: worst = n - d
                    d += x.states
                    j -= 1; fall = True
            if worst > 0:
                ins.insert(i, Ins("  s_nop %d" % (worst - 1)))
                total += 1
                changed = True
                break
    return [x.text for x in ins], total

class Asm:
    def __init__(self):
        self.L = []
        self.uid = 0
    def __call__(self, s):
        for l in s.split("\n"):
            l = l.rstrip()
            if not l.strip(): continue
            self.L.append(l if l.strip().endswith(":") or l.startswith((".", ";")) else "  " + l.strip())
    def lbl(self, base="L"):
        self.uid += 1
        return "%s_%d" % (base, self.uid)
```

```python
import sys, struct
from asmlib import Asm, fix_hazards
NAME = "recurrent_scan__gqa_block_cached__glu_gated_geglu__decode"

def f32(x): return "0x%08x" % struct.unpack("<I", struct.pack("<f", x))[0]
LOG2E = 1.4426950408889634

QP, PART, LSE, SP, YP, EPOCH = 0, 0x40000, 0xC0000, 0x100000, 0x140000, 0x180000
STAMP = 256 << 20
QL, RED, CNT, HB, ACC, MLO, OB = 0, 1024, 6144, 6400, 8192, 16896, 17152
REDW, ACCH, ACCW = 1152, 528, 2112
LDS_BYTES = 17408
P_X, P_K, P_V, P_WQ, P_WO, P_BX, P_WG, P_WU, P_WD, P_OUT, P_DBG, P_WS = [16 + 2 * i for i in range(12)]
def sp(n): return f"s[{n}:{n+1}]"
def vr(n, c=4): return f"v[{n}:{n+c-1}]"
S_WAVE, S_G, S_J, S_B, S_KVH = "s3", "s4", "s5", "s6", "s7"
S_SELLO, S_SELHI, S_SCALE, S_LOG2E = "s50", "s51", "s52", "s53"
S_TAG, S_FF, S_TASK = "s48", "s49", "s46"
SPIN = 20000

def gen(path, D=4, stamps=False, kvpol="nt", wpol="nt", sleep_tail=2, sleep_q=4, sleep0=60, prio=3, thr=32, DS=8, pat=1, far0=1, tstamp=0, ffn_sleep=0):
    a = Asm()
    a(f"; @launch grid=(256,1,1) block=(512,1,1) lds={LDS_BYTES}")
    if stamps: a("; STAMPX 2048")
    if tstamp: a("; TSTAMP 1024")
    a('.amdgcn_target "amdgcn-amd-amdhsa--gfx950"')
    a(".text")
    a(f".globl {NAME}_kernel")
    a(".p2align 8")
    a(f".type {NAME}_kernel,@function")
    a(f"{NAME}_kernel:")
    a("s_cmp_ge_u32 s2, 256")
    a("s_cbranch_scc1 L_exit")
    if stamps:
        a("s_memrealtime s[80:81]")
        for k in range(82, 92): a(f"s_mov_b32 s{k}, 0")
    a("s_load_dwordx16 s[16:31], s[0:1], 0")
    a("s_load_dwordx8 s[32:39], s[0:1], 64")
    a("v_lshrrev_b32 v1, 6, v0")
    a("v_and_b32 v0, 63, v0")
    a(f"v_readfirstlane_b32 {S_WAVE}, v1")
    a(f"s_lshr_b32 {S_G}, s2, 4")
    a(f"s_and_b32 {S_J}, s2, 15")
    a(f"s_lshr_b32 {S_B}, s2, 7")
    a(f"s_and_b32 {S_KVH}, {S_G}, 7")
    a(f"s_mov_b32 {S_TASK}, s2")
    a(f"s_mov_b32 {S_SELLO}, 0x05040100")
    a(f"s_mov_b32 {S_SELHI}, 0x07060302")
    a(f"s_mov_b32 {S_SCALE}, {f32(128 ** -0.5)}")
    a(f"s_mov_b32 {S_LOG2E}, {f32(LOG2E)}")
    a(f"s_movk_i32 {S_FF}, 0xff")
    a(f"s_cmp_ge_u32 {S_WAVE}, 4")
    a("s_cbranch_scc1 L_helper")

    def perm4(dst, src, e):
        sel = S_SELHI if e & 1 else S_SELLO
        for u in range(4):
            a(f"v_perm_b32 v{dst+u}, v{src+4*(2*u+1)+(e>>1)}, v{src+4*(2*u)+(e>>1)}, {sel}")

    def perm_mfma(src, B, acc, tmp, first):
        perm4(tmp, src, 0)
        for e in range(8):
            if e + 1 < 8: perm4(tmp + 4 * ((e + 1) & 3), src, e + 1)
            c = "0" if first else vr(acc + 4 * e)
            a(f"v_mfma_f32_16x16x32_bf16 {vr(acc+4*e)}, {vr(tmp+4*(e&3))}, {vr(B)}, {c}")

    def bvar_reads(bv, addr, off):
        for e in range(8):
            m = 0x01010101 << e
            a(f"s_mov_b32 exec_lo, 0x{m:08x}")
            a(f"s_mov_b32 exec_hi, 0x{m:08x}")
            for o, b in zip(off, bv): a(f"ds_read_b128 {vr(b+4*e)}, v{addr} offset:{o}")
        a("s_mov_b64 exec, -1")

    def acc_to_lds(acc, addr):
        for r in range(4):
            for e in range(0, 8, 2):
                a(f"ds_write2_b32 v{addr}, v{acc+4*e+r}, v{acc+4*(e+1)+r} offset0:{8*r+e} offset1:{8*r+e+1}")

    def swap_op(op, regs, tmps, which):
        for r, t in zip(regs, tmps): a(f"v_mov_b32 v{t}, v{r}")
        for r, t in zip(regs, tmps): a(f"v_permlane{which}_swap_b32 v{r}, v{t}")
        for r, t in zip(regs, tmps): a(f"{op} v{r}, v{r}, v{t}")

    def allreduce_add(regs, tmps):
        for sh in (8, 4, 2, 1):
            for r in regs: a(f"v_add_f32_dpp v{r}, v{r}, v{r} row_ror:{sh} row_mask:0xf bank_mask:0xf")
        swap_op("v_add_f32", regs, tmps, 16)
        swap_op("v_add_f32", regs, tmps, 32)

    def rne(dst, src):
        a(f"v_cvt_pk_bf16_f32 v{dst}, v{src}, v{src}")
        a(f"v_and_b32 v{dst}, 0xffff0000, v{dst}")

    def unpack8(dst, src):
        for n in range(4):
            a(f"v_lshlrev_b32 v{dst+2*n}, 16, v{src+n}")
            a(f"v_and_b32 v{dst+2*n+1}, 0xffff0000, v{src+n}")

    def rne_pairs(regs, tmps):
        for i in range(0, len(regs), 2): a(f"v_cvt_pk_bf16_f32 v{tmps[i//2]}, v{regs[i]}, v{regs[i+1]}")
        for i in range(0, len(regs), 2):
            a(f"v_lshlrev_b32 v{regs[i]}, 16, v{tmps[i//2]}")
            a(f"v_and_b32 v{regs[i+1]}, 0xffff0000, v{tmps[i//2]}")

    def load_tag():
        a(f"s_load_dword {S_TAG}, {sp(P_WS)}, {EPOCH & 0xfffff}") if EPOCH < (1 << 20) else (
            a(f"s_mov_b32 s47, {EPOCH}"), a(f"s_load_dword {S_TAG}, {sp(P_WS)}, s47"))

    def make_tag(vt):
        a(f"s_mul_i32 {S_TAG}, {S_TAG}, 1664525")
        a(f"s_add_u32 {S_TAG}, {S_TAG}, 1013904223")
        a(f"v_mov_b32 v{vt}, {S_TAG}")
        for n in range(1, 4): a(f"v_lshrrev_b32 v{vt+n}, {8*n}, v{vt}")

    def enc(regs4, vt):
        for n, r in enumerate(regs4): a(f"v_bfi_b32 v{r}, {S_FF}, v{vt+(n&3)}, v{r}")

    def chk(acc, regs, vt, first=True):
        for n, r in enumerate(regs):
            if first and n == 0: a(f"v_xor_b32 v{acc}, v{r}, v{vt}")
            else: a(f"v_bitop3_b32 v{acc}, v{acc}, v{r}, v{vt+(n&3)} bitop3:0xf6")

    def poll(tag, loads, regs, vt, sleep, acc=7, extra=None):
        a(f"s_mov_b32 s67, {SPIN}")
        a(f"L_p{tag}:")
        loads()
        a("s_waitcnt vmcnt(0)")
        chk(acc, regs, vt)
        a(f"v_and_b32 v{acc}, {S_FF}, v{acc}")
        if extra: extra(acc)
        a(f"v_cmp_ne_u32 vcc, 0, v{acc}")
        a(f"s_cbranch_vccz L_g{tag}")
        a("s_sub_u32 s67, s67, 1")
        a(f"s_cbranch_scc1 L_g{tag}")
        if sleep: a(f"s_sleep {sleep}")
        a(f"s_branch L_p{tag}")
        a(f"L_g{tag}:")

    def ts(k):
        if stamps:
            a(f"s_memrealtime s[{82+2*k}:{83+2*k}]")
            a("s_waitcnt lgkmcnt(0)")

    def stamp():
        if not stamps: return
        a("s_memrealtime s[92:93]")
        a("s_lshl_b32 s94, s2, 3")
        a(f"s_add_u32 s94, s94, {S_WAVE}")
        a("s_lshl_b32 s94, s94, 5")
        a(f"s_add_u32 s94, s94, {STAMP}")
        a("s_getreg_b32 s95, hwreg(HW_REG_XCC_ID)")
        a("s_waitcnt lgkmcnt(0)")
        a("s_mov_b64 exec, 1")
        a("v_mov_b32 v4, s80"); a("v_mov_b32 v5, s92"); a("v_mov_b32 v6, s95"); a("v_mov_b32 v7, s82")
        a("v_mov_b32 v8, s84"); a("v_mov_b32 v9, s86"); a("v_mov_b32 v10, s88"); a("v_mov_b32 v11, s90")
        a("v_mov_b32 v1, s94")
        a(f"global_store_dwordx4 v1, v[4:7], {sp(P_WS)}")
        a(f"global_store_dwordx4 v1, v[8:11], {sp(P_WS)} offset:16")

    VOK, VOV, VM, VL = 1, 2, 3, 4
    S0, Q0, AC = 8, 16, 32
    ST = [64, 128, 192]
    a("v_and_b32 v5, 3, v0")
    a("v_lshlrev_b32 v5, 10, v5")
    a("v_bfe_u32 v6, v0, 2, 2")
    a("v_lshl_add_u32 v5, v6, 8, v5")
    a("v_lshrrev_b32 v6, 4, v0")
    a(f"v_lshl_add_u32 v{VOK}, v6, 4, v5")
    a(f"v_lshlrev_b32 v{VOV}, 4, v0")
    if pat == 0:   JB, TB, TT = (14, 15, 16, 17), 18, 19
    elif pat == 1: JB, TB, TT = (14, 19, 20, 21), 22, 15
    elif pat == 2: JB, TB, TT = (19, 20, 21, 22), 14, 15
    a(f"s_lshl_b32 s60, {S_G}, 23")
    a(f"s_and_b32 s61, {S_J}, 1")
    a(f"s_lshl_b32 s61, s61, {JB[0]}")
    a("s_add_u32 s60, s60, s61")
    a(f"s_lshr_b32 s61, {S_J}, 1")
    a(f"s_lshl_b32 s61, s61, {JB[1]}")
    a("s_add_u32 s60, s60, s61")
    a(f"s_lshl_b32 s61, {S_WAVE}, 12")
    a("s_add_u32 s60, s60, s61")
    a("s_waitcnt lgkmcnt(0)")
    a(f"s_mov_b32 s8, s{P_K}"); a(f"s_and_b32 s9, s{P_K+1}, 0xffff"); a(f"s_mov_b32 s10, {128<<20}"); a("s_mov_b32 s11, 0x20000")
    a(f"s_mov_b32 s12, s{P_V}"); a(f"s_and_b32 s13, s{P_V+1}, 0xffff"); a(f"s_mov_b32 s14, {128<<20}"); a("s_mov_b32 s15, 0x20000")

    def tile_loads(st, hook=None):
        for T in range(2):
            for s in range(4):
                a(f"buffer_load_dwordx4 {vr(st+16*T+4*s)}, v{VOK}, s[8:11], s{62+T} offen offset:{s*64} {kvpol}")
                if hook: hook()
        for T in range(2):
            for r in range(4):
                a(f"buffer_load_dwordx4 {vr(st+32+16*T+4*r)}, v{VOV}, s[12:15], s{62+T} offen offset:{r*1024} {kvpol}")
                if hook: hook()
        if tstamp:
            a("s_memrealtime s[76:77]")
            a("s_mov_b32 m0, s78")
            a("s_waitcnt lgkmcnt(0)")
            a("v_writelane_b32 v0, s76, m0")
            a("s_add_u32 s78, s78, 1")

    a("s_mov_b32 s78, 0")
    a("v_and_b32 v7, 3, v0")
    cnt = [0]
    def pro_hook():
        cnt[0] += 1
        if cnt[0] == min(D, 4): a("s_barrier")
        if cnt[0] > D and cnt[0] < thr:
            a(f"s_waitcnt vmcnt({D})")
    for t in range(3):
        a(f"s_add_u32 s62, s60, {t<<TT}")
        a(f"s_add_u32 s63, s62, {1<<TB}")
        tile_loads(ST[t], pro_hook)
    for i in range(32): a(f"v_mov_b32 v{AC+i}, 0")
    a(f"v_mov_b32 v{VM}, 0xff7fffff")
    a(f"v_mov_b32 v{VL}, 0")
    a("v_lshlrev_b32 v8, 8, v7")
    a("v_lshl_add_u32 v8, v6, 4, v8")
    a(f"s_mul_i32 s62, {S_WAVE}, {ACCW}")
    a(f"s_add_u32 s62, s62, {ACC}")
    a(f"v_mul_u32_u24 v5, {ACCH}, v7")
    a("v_lshl_add_u32 v5, v6, 7, v5")
    a("v_add_u32 v5, s62, v5")
    a(f"s_lshl_b32 s62, {S_WAVE}, 2")
    a(f"s_add_u32 s62, s62, {MLO}")
    a("v_lshl_add_u32 v6, v7, 4, s62")
    a(f"s_add_u32 s62, s60, {3<<TT}")
    a(f"s_add_u32 s63, s62, {1<<TB}")
    a("s_mov_b32 s61, 0")
    ts(0)
    a("s_barrier")
    ts(1)
    for s in range(4): a(f"ds_read_b128 {vr(Q0+4*s)}, v8 offset:{QL+s*64}")
    a("s_waitcnt lgkmcnt(0)")

    def ladder(k, n0, tag):
        if k == 0:
            a("s_cmp_lg_u32 s61, 15")
            a(f"s_cbranch_scc1 L_a{tag}")
            a(f"s_waitcnt vmcnt({n0-16})")
            a(f"L_a{tag}:")
        if far0 and k == 1:
            a("s_cmp_eq_u32 s61, 1")
            a(f"s_cbranch_scc1 L_a{tag}")
            a(f"s_waitcnt vmcnt({n0})")
            a(f"L_a{tag}:")
            a(f"s_waitcnt vmcnt({n0+16})")
        else:
            a(f"s_waitcnt vmcnt({n0})")

    def adv():
        a(f"s_add_u32 s62, s62, {1<<TT}")
        a(f"s_add_u32 s63, s63, {1<<TT}")

    def section(k):
        st = ST[k]
        K = st; V = st + 32
        a(f"L_sec{k}:")
        ladder(k, 24, f"k{k}")
        for T in range(2):
            for s in range(4):
                c = "0" if s == 0 else vr(S0 + 4 * T)
                a(f"v_mfma_f32_16x16x32_bf16 {vr(S0+4*T)}, {vr(K+16*T+4*s)}, {vr(Q0+4*s)}, {c}")
        x = [S0 + i for i in range(8)]
        tp = [K + i for i in range(4)]
        P = K + 4; AL = K + 8; MC = K + 10; T2 = K + 11; TMP = K + 16
        rne_pairs(x, tp)
        for i in x: a(f"v_mul_f32 v{i}, {S_SCALE}, v{i}")
        rne_pairs(x, tp)
        a(f"v_max3_f32 v7, v{x[0]}, v{x[1]}, v{x[2]}")
        a(f"v_max3_f32 v7, v7, v{x[3]}, v{x[4]}")
        a(f"v_max3_f32 v7, v7, v{x[5]}, v{x[6]}")
        a(f"v_max3_f32 v7, v7, v{x[7]}, v{VM}")
        swap_op("v_max_f32", [7], [T2], 16)
        swap_op("v_max_f32", [7], [T2], 32)
        a(f"v_sub_f32 v{AL}, v{VM}, v7")
        a(f"v_mul_f32 v{MC}, {S_LOG2E}, v7")
        a(f"v_mul_f32 v{AL}, {S_LOG2E}, v{AL}")
        a(f"v_mov_b32 v{VM}, v7")
        a(f"v_exp_f32 v{AL}, v{AL}")
        for i in x: a(f"v_fma_f32 v{i}, v{i}, {S_LOG2E}, -v{MC}")
        for i in x: a(f"v_exp_f32 v{i}, v{i}")
        for i in range(16): a(f"v_pk_mul_f32 {vr(AC+2*i,2)}, {vr(AC+2*i,2)}, {vr(AL,2)} op_sel_hi:[1,0]")
        for p in range(4): a(f"v_cvt_pk_bf16_f32 v{P+p}, v{x[2*p]}, v{x[2*p+1]}")
        a(f"v_mul_f32 v{VL}, v{VL}, v{AL}")
        a(f"v_add_f32 v{x[0]}, v{x[0]}, v{x[1]}"); a(f"v_add_f32 v{x[2]}, v{x[2]}, v{x[3]}")
        a(f"v_add_f32 v{x[4]}, v{x[4]}, v{x[5]}"); a(f"v_add_f32 v{x[6]}, v{x[6]}, v{x[7]}")
        a(f"v_add_f32 v{x[0]}, v{x[0]}, v{x[2]}"); a(f"v_add_f32 v{x[4]}, v{x[4]}, v{x[6]}")
        a(f"v_add_f32 v{VL}, v{VL}, v{x[0]}"); a(f"v_add_f32 v{VL}, v{VL}, v{x[4]}")
        ladder(k, 16, f"v{k}")
        perm_mfma(V, P, AC, TMP, False)
        a("s_add_u32 s61, s61, 1")
        nxt = f"L_sec{(k+1)%3}"
        if k == 0:
            a("s_cmp_eq_u32 s61, 16")
            a("s_cbranch_scc1 L_sdone")
            a("s_cmp_eq_u32 s61, 1")
            a(f"s_cbranch_scc1 {'L_far0' if far0 else nxt}")
        if k == 1 and far0:
            a("s_cmp_eq_u32 s61, 2")
            a(f"s_cbranch_scc1 {nxt}")
        if k == 2:
            a("s_cmp_eq_u32 s61, 15")
            a(f"s_cbranch_scc1 {nxt}")
        tile_loads(ST[(k+2)%3], (lambda: a(f"s_waitcnt vmcnt({DS})")) if DS else None)
        adv()
        if k == 2: a(f"s_branch {nxt}")
        if k == 0 and far0:
            a(f"s_branch {nxt}")
            a("L_far0:")
            tile_loads(ST[0])
            adv()

    section(0); section(1); section(2)
    a("L_sdone:")
    ts(2)
    a("s_mov_b32 s64, 0x000f000f"); a("s_mov_b32 s65, 0x000f000f")
    swap_op("v_add_f32", [VL], [7], 16)
    swap_op("v_add_f32", [VL], [7], 32)
    a(f"v_mul_f32 v{VM}, {S_LOG2E}, v{VM}")
    a("s_mov_b64 exec, s[64:65]")
    a(f"ds_write2_b32 v6, v{VM}, v{VL} offset0:0 offset1:16")
    for e in range(8): a(f"ds_write_b128 v5, {vr(AC+4*e)} offset:{16*e}")
    a("s_waitcnt lgkmcnt(0)")
    a("s_barrier")
    ts(3)
    if tstamp:
        a("s_lshl_b32 s94, s2, 2")
        a(f"s_add_u32 s94, s94, {S_WAVE}")
        a("s_lshl_b32 s94, s94, 6")
        a(f"s_add_u32 s94, s94, {STAMP + (1 << 20)}")
        a("s_mov_b64 exec, 0xffff")
        a(f"v_lshrrev_b32 v7, 2, v{VOV}")
        a("v_add_u32 v7, s94, v7")
        a(f"global_store_dword v7, v0, {sp(P_WS)}")
    a("s_branch L_fin")

    a("L_helper:")
    if prio: a(f"s_setprio {prio}")
    HW = "s54"
    a(f"s_sub_u32 {HW}, {S_WAVE}, 4")
    VG, VC = 1, 2
    HVT = 252
    a(f"v_lshrrev_b32 v{VG}, 4, v0")
    a(f"v_and_b32 v{VC}, 15, v0")
    a("v_lshlrev_b32 v3, 4, v0")
    a(f"s_and_b32 s55, {S_TASK}, 3")
    a("s_lshl_b32 s55, s55, 7")
    a(f"s_lshl_b32 s56, {HW}, 5")
    a("s_add_u32 s55, s55, s56")
    a(f"s_sub_u32 s57, {S_TASK}, 128")
    a("s_lshr_b32 s58, s57, 3")
    a(f"s_lshr_b32 s59, {S_TASK}, 2")
    a(f"s_cmp_lt_u32 {S_TASK}, 128")
    a("s_cselect_b32 s58, s59, s58")
    a("s_movk_i32 s59, 3584")
    a("s_cselect_b32 s59, 8192, s59")
    a("s_lshl_b32 s42, s59, 9")
    a("s_mov_b32 s43, 0x20000")
    a(f"s_lshl_b32 s62, {S_B}, 4")
    a(f"s_add_u32 s62, s62, {S_J}")
    a(f"s_sub_u32 s66, {S_TASK}, 200")
    a("s_waitcnt lgkmcnt(0)")
    load_tag()
    a("s_bitcmp1_b32 s57, 2")
    a(f"s_cselect_b32 s40, s{P_WU}, s{P_WG}")
    a(f"s_cselect_b32 s41, s{P_WU+1}, s{P_WG+1}")
    a(f"s_cmp_lt_u32 {S_TASK}, 128")
    a(f"s_cselect_b32 s40, s{P_WQ}, s40")
    a(f"s_cselect_b32 s41, s{P_WQ+1}, s41")
    a("s_and_b32 s41, s41, 0xffff")
    X0, XB, WR, HACC, HT = 8, 16, 64, 32, 224
    WA, WD = 128, 192
    a(f"s_lshl_b32 s63, {HW}, 2")
    a("v_mov_b32 v6, s63")
    a("v_mov_b32 v5, 0")
    a(f"ds_write_b32 v6, v5 offset:{CNT}")
    a(f"s_cmp_ge_u32 {S_TASK}, 240")
    a("s_cbranch_scc1 L_nopre")
    a(f"global_load_dwordx4 {vr(X0)}, v3, {sp(P_X)}")
    a(f"global_load_dwordx4 {vr(X0+4)}, v3, {sp(P_X)} offset:1024")
    a("v_and_b32 v4, 1, v0")
    a("v_lshlrev_b32 v4, 10, v4")
    a(f"v_lshl_add_u32 v4, v{VG}, 4, v4")
    a("s_lshl_b32 s56, s55, 1")
    a("v_add_u32 v4, s56, v4")
    a(f"global_load_dwordx4 {vr(XB)}, v4, {sp(P_X)}")
    a(f"v_lshlrev_b32 v4, 3, v{VG}")
    a("v_mul_lo_u32 v4, v4, s59")
    a(f"v_lshl_add_u32 v4, v{VC}, 4, v4")
    a("s_mul_i32 s56, s55, s59")
    a("s_lshl_b32 s58, s58, 8")
    a("s_add_u32 s56, s56, s58")
    for i in range(8):
        a(f"buffer_load_dwordx4 {vr(WR+4*i)}, v4, s[40:43], s56 offen {wpol}")
        if i < 7: a("s_add_u32 s56, s56, s59")
    a("s_waitcnt lgkmcnt(0)")
    a("s_barrier")
    make_tag(HVT)
    a("s_waitcnt vmcnt(8)")
    U0, U1 = 144, 152
    unpack8(U0, X0); unpack8(U1, X0 + 4)
    for U, s in ((U0, 24), (U1, 25)):
        a(f"v_add_f32 v{s}, v{U}, v{U+1}")
        for n in range(2, 8): a(f"v_add_f32 v{s}, v{s}, v{U+n}")
    allreduce_add([24, 25], [26, 27])
    a(f"v_mul_f32 v24, {f32(1/512)}, v24"); a(f"v_mul_f32 v25, {f32(1/512)}, v25")
    for U, s, d in ((U0, 24, 28), (U1, 25, 29)):
        for n in range(8): a(f"v_sub_f32 v{U+n}, v{U+n}, v{s}")
        a(f"v_mul_f32 v{d}, v{U}, v{U}")
        for n in range(1, 8): a(f"v_fmac_f32 v{d}, v{U+n}, v{U+n}")
    allreduce_add([28, 29], [26, 27])
    a("s_mov_b32 s64, 0xaaaaaaaa"); a("s_mov_b32 s65, 0xaaaaaaaa")
    a("v_cndmask_b32 v24, v24, v25, s[64:65]")
    a("v_cndmask_b32 v28, v28, v29, s[64:65]")
    a(f"v_mul_f32 v28, {f32(1/512)}, v28")
    rne(24, 24); rne(28, 28)
    a(f"v_add_f32 v28, {f32(1e-5)}, v28")
    rne(28, 28)
    a("v_sqrt_f32 v28, v28")
    rne(28, 28)
    a("v_rcp_f32 v29, v28")
    unpack8(U0, XB)
    xs = [U0 + n for n in range(8)]
    for r in xs: a(f"v_sub_f32 v{r}, v{r}, v24")
    rne_pairs(xs, [160 + n for n in range(8)])
    for n, r in enumerate(xs): a(f"v_mul_f32 v{160+n}, v{r}, v29")
    for n, r in enumerate(xs): a(f"v_fma_f32 v{r}, -v{160+n}, v28, v{r}")
    for n, r in enumerate(xs): a(f"v_fma_f32 v{r}, v{r}, v29, v{160+n}")
    for n in range(4): a(f"v_cvt_pk_bf16_f32 v{XB+n}, v{xs[2*n]}, v{xs[2*n+1]}")
    a("s_waitcnt vmcnt(0)")
    ts(0)
    perm_mfma(WR, XB, HACC, HT, True)
    a(f"s_mul_i32 s63, {HW}, {REDW}")
    a(f"s_add_u32 s63, s63, {RED}")
    a(f"v_lshl_add_u32 v5, v{VC}, 2, v{VG}")
    a("v_mul_u32_u24 v5, 144, v5")
    a("v_add_u32 v5, s63, v5")
    a(f"s_lshl_b32 s63, {HW}, 2")
    a(f"v_mov_b32 v6, s63")
    a("s_mov_b32 s64, 0x00030003"); a("s_mov_b32 s65, 0x00030003")
    a("s_mov_b64 exec, s[64:65]")
    acc_to_lds(HACC, 5)
    a("v_mov_b32 v7, 1")
    a(f"ds_write_b32 v6, v7 offset:{CNT}")
    a("s_mov_b64 exec, -1")
    a(f"s_cmp_lg_u32 {HW}, 3")
    a("s_cbranch_scc1 L_pre_done")
    a("v_mov_b32 v6, 0")
    a("v_lshrrev_b32 v8, 3, v0")
    a("v_lshl_add_u32 v8, v8, 4, v3")
    a(f"s_mov_b32 s67, {SPIN}")
    a("L_rpoll:")
    a(f"ds_read_b128 v[28:31], v6 offset:{CNT}")
    for w in range(4): a(f"ds_read_b128 {vr(32+4*w)}, v8 offset:{RED+w*REDW}")
    a("s_waitcnt lgkmcnt(4)")
    a("v_and_b32 v7, v28, v29")
    a("v_and_b32 v7, v7, v30")
    a("v_and_b32 v7, v7, v31")
    a("v_cmp_ne_u32 vcc, 1, v7")
    a("s_cbranch_vccz L_rgo")
    a("s_sub_u32 s67, s67, 1")
    a("s_cbranch_scc0 L_rpoll")
    a("L_rgo:")
    a(f"s_lshl_b32 s63, {S_TASK}, 10")
    a("v_add_u32 v5, s63, v3")
    a("s_waitcnt lgkmcnt(0)")
    for n in range(4):
        a(f"v_add_f32 v{32+n}, v{32+n}, v{36+n}")
        a(f"v_add_f32 v{40+n}, v{40+n}, v{44+n}")
    for n in range(4): a(f"v_add_f32 v{32+n}, v{32+n}, v{40+n}")
    enc([32, 33, 34, 35], HVT)
    a(f"global_store_dwordx4 v5, v[32:35], {sp(P_WS)} sc1")
    a("s_branch L_pre_done")
    a("L_nopre:")
    a("s_waitcnt lgkmcnt(0)")
    a("s_barrier")
    make_tag(HVT)
    if sleep0: a(f"s_sleep {sleep0}")
    a("L_pre_done:")
    ts(1)
    a(f"s_lshl_b32 s63, {S_KVH}, 2")
    a(f"s_add_u32 s63, s63, {HW}")
    a("s_lshl_b32 s64, s63, 12")
    a(f"s_lshl_b32 s65, {S_B}, 9")
    a("s_add_u32 s64, s64, s65")
    a("v_lshrrev_b32 v5, 5, v0")
    a("v_lshl_add_u32 v5, v5, 10, s64")
    a("v_and_b32 v6, 31, v0")
    a("v_lshl_add_u32 v5, v6, 4, v5")
    a(f"s_lshl_b32 s64, {HW}, 8")
    a("v_lshl_add_u32 v6, v6, 3, s64")
    def q_loads():
        a(f"global_load_dwordx4 v[32:35], v5, {sp(P_WS)} sc1")
        a(f"global_load_dwordx4 v[36:39], v5, {sp(P_WS)} offset:2048 sc1")
    poll("q", q_loads, list(range(32, 40)), HVT, sleep_q)
    ts(2)
    for n in range(4): a(f"v_add_f32 v{32+n}, v{32+n}, v{36+n}")
    swap_op("v_add_f32", [32, 33, 34, 35], [36, 37, 38, 39], 32)
    a("v_cvt_pk_bf16_f32 v32, v32, v33")
    a("v_cvt_pk_bf16_f32 v33, v34, v35")
    a(f"ds_write_b64 v6, v[32:33] offset:{QL}")
    a("s_waitcnt lgkmcnt(0)")
    a("s_barrier")
    a(f"v_lshlrev_b32 v4, 13, v{VG}")
    a(f"v_lshl_add_u32 v4, v{VC}, 4, v4")
    a("s_cmp_ge_u32 s66, 56")
    a("s_cbranch_scc1 L_noffn2")
    for _ in range(ffn_sleep): a("s_sleep 127")
    a(f"s_mov_b32 s40, s{P_WD}"); a(f"s_and_b32 s41, s{P_WD+1}, 0xffff"); a(f"s_mov_b32 s42, {1792*1024}"); a("s_mov_b32 s43, 0x20000")
    a("s_lshl_b32 s56, s66, 15")
    a(f"s_lshl_b32 s57, {HW}, 8")
    a("s_add_u32 s56, s56, s57")
    a("s_add_u32 s57, s56, 4096")
    for i in range(8):
        a(f"buffer_load_dwordx4 {vr(WR+4*i)}, v4, s[40:43], s{56+(i>>2)} offen offset:{(i&3)*1024} {wpol}")
    a("s_and_b32 s63, s66, 0xfc")
    a("s_add_u32 s63, s63, 64")
    a("s_lshl_b32 s63, s63, 11")
    a("s_and_b32 s64, s66, 3")
    a("s_lshl_b32 s64, s64, 7")
    a("s_add_u32 s63, s63, s64")
    a(f"v_lshl_add_u32 v5, v{VG}, 10, s63")
    a("v_bfe_u32 v6, v0, 3, 1")
    a("v_lshl_add_u32 v5, v6, 9, v5")
    a("v_and_b32 v8, 7, v0")
    a("v_lshl_add_u32 v5, v8, 4, v5")
    a("v_add_u32 v9, 0x1000, v5")
    a(f"s_lshl_b32 s63, {HW}, 7")
    a(f"s_add_u32 s63, s63, {HB}")
    a(f"v_lshl_add_u32 v10, v{VC}, 3, s63")
    a("v_lshl_add_u32 v11, v6, 6, s63")
    a(f"v_lshl_add_u32 v11, v{VG}, 4, v11")
    BV = 96
    for n in range(32): a(f"v_mov_b32 v{BV+n}, 0")
    a(f"s_lshl_b32 s63, {HW}, 2")
    a("v_lshl_add_u32 v12, v6, 4, s63")
    a(f"v_add_u32 v12, v12, v{VG}")
    a("v_lshl_add_u32 v12, v12, 6, s66")
    a("v_lshlrev_b32 v12, 7, v12")
    a("v_lshl_add_u32 v12, v8, 4, v12")
    a(f"v_add_u32 v12, {YP}, v12")
    def gu_loads():
        a(f"global_load_dwordx4 {vr(128)}, v5, {sp(P_WS)} sc1")
        a(f"global_load_dwordx4 {vr(132)}, v9, {sp(P_WS)} sc1")
    poll("f", gu_loads, list(range(128, 136)), HVT, 16)
    swap_op("v_add_f32", list(range(128, 136)), list(range(136, 144)), 16)
    swap_op("v_add_f32", list(range(128, 136)), list(range(136, 144)), 32)
    G = [128 + n for n in range(4)]; U = [132 + n for n in range(4)]; Z = [176 + n for n in range(4)]
    rne_pairs(G + U, [184, 185, 186, 187])
    kb_ = 0.7978845608028654
    a(f"s_mov_b32 s63, {f32(-2*LOG2E*kb_*0.044715)}")
    a(f"v_mov_b32 v188, {f32(-2*LOG2E*kb_)}")
    for n in range(4): a(f"v_mul_f32 v{Z[n]}, v{G[n]}, v{G[n]}")
    for n in range(4): a(f"v_fma_f32 v{Z[n]}, v{Z[n]}, s63, v188")
    for n in range(4): a(f"v_mul_f32 v{Z[n]}, v{Z[n]}, v{G[n]}")
    for n in range(4): a(f"v_exp_f32 v{Z[n]}, v{Z[n]}")
    for n in range(4): a(f"v_add_f32 v{Z[n]}, 1.0, v{Z[n]}")
    for n in range(4): a(f"v_rcp_f32 v{Z[n]}, v{Z[n]}")
    for n in range(4): a(f"v_mul_f32 v{G[n]}, v{G[n]}, v{Z[n]}")
    rne_pairs(G, [184, 185])
    for n in range(4): a(f"v_mul_f32 v{G[n]}, v{G[n]}, v{U[n]}")
    for n in range(2): a(f"v_cvt_pk_bf16_f32 v{136+n}, v{G[2*n]}, v{G[2*n+1]}")
    a("ds_write_b64 v10, v[136:137]")
    bvar_reads([BV], 11, [0])
    for e in range(8): perm4(144 + 4 * e, WR, e)
    a("s_waitcnt lgkmcnt(0)")
    for e in range(8):
        a(f"v_mfma_f32_16x16x32_bf16 {vr(HACC)}, {vr(144+4*e)}, {vr(BV+4*e)}, {'0' if e == 0 else vr(HACC)}")
    enc(list(range(HACC, HACC + 4)), HVT)
    a(f"global_store_dwordx4 v12, {vr(HACC)}, {sp(P_WS)} sc1")
    a("L_noffn2:")
    a(f"s_cmp_eq_u32 {HW}, 0")
    a("s_cbranch_scc1 L_h0")
    a(f"s_cmp_lg_u32 {HW}, 1")
    a("s_cbranch_scc1 L_merge")
    a(f"s_sub_u32 s68, {S_TASK}, 0")
    a("s_cmp_ge_u32 s68, 32")
    a("s_cbranch_scc1 L_fin")

    def poll_sum(tag, base, nloads, dst, sleep, pre=None):
        a("s_lshl_b32 s63, s68, 13")
        a(f"s_add_u32 s63, s63, {base}")
        a("v_add_u32 v5, s63, v3")
        a("v_add_u32 v6, 0x1000, v5")
        if pre: pre()
        def lds_():
            for u in range(nloads):
                a(f"global_load_dwordx4 {vr(64+4*u)}, v{5+(u>>2)}, {sp(P_WS)} offset:{(u&3)*1024} sc1")
        poll(tag, lds_, list(range(64, 64 + 4 * nloads)), HVT, sleep)
        for u in range(1, nloads):
            for n in range(4): a(f"v_add_f32 v{64+n}, v{64+n}, v{64+4*u+n}")
        for n in range(4): a(f"v_add_f32_dpp v{64+n}, v{64+n}, v{64+n} row_ror:8 row_mask:0xf bank_mask:0xf")
        swap_op("v_add_f32", [64, 65, 66, 67], [68, 69, 70, 71], 16)
        swap_op("v_add_f32", [64, 65, 66, 67], [68, 69, 70, 71], 32)
        a(f"v_cndmask_b32 v{dst}, v64, v65, s[70:71]")
        a(f"v_cndmask_b32 v{dst}, v{dst}, v66, s[72:73]")
        a(f"v_cndmask_b32 v{dst}, v{dst}, v67, s[74:75]")
        rne(dst, dst)

    a("s_mov_b32 s70, 0x0000ff00"); a("s_mov_b32 s71, 0x0000ff00")
    a("s_mov_b32 s72, 0x00ff0000"); a("s_mov_b32 s73, 0x00ff0000")
    a("s_mov_b32 s74, 0xff000000"); a("s_mov_b32 s75, 0xff000000")
    a("v_and_b32 v10, 31, v0")
    a("s_lshl_b32 s63, s68, 5")
    a("v_add_u32 v10, s63, v10")
    a("v_lshlrev_b32 v10, 1, v10")
    a(f"global_load_ushort v11, v10, {sp(P_X)}")
    a("s_sleep 120")
    poll_sum("y", YP, 7, 12, 64)
    a(f"v_mul_f32 v13, {f32(-LOG2E)}, v12")
    a("v_exp_f32 v13, v13")
    a("v_add_f32 v13, 1.0, v13")
    a("v_rcp_f32 v13, v13")
    a("v_mul_f32 v12, v12, v13")
    rne(12, 12)
    a("v_lshlrev_b32 v11, 16, v11")
    def b2():
        ts(3)
        a("s_barrier")
    poll_sum("s", SP, 8, 13, sleep_tail, pre=b2)
    ts(4)
    a("v_mul_f32 v13, v13, v12")
    rne(13, 13)
    a("v_add_f32 v13, v13, v11")
    a("v_cvt_pk_bf16_f32 v13, v13, v13")
    a("s_mov_b32 s64, -1"); a("s_mov_b32 s65, 0")
    a("s_mov_b64 exec, s[64:65]")
    a(f"global_store_short v10, v13, {sp(P_OUT)}")
    a("s_cmp_lg_u32 s68, 0")
    a("s_cbranch_scc1 L_fin")
    a("s_mov_b64 exec, 1")
    a(f"v_mov_b32 v10, {EPOCH}")
    a(f"global_store_dword v10, v{HVT}, {sp(P_WS)}")
    a("s_branch L_fin")

    a("L_merge:")
    a("v_lshrrev_b32 v5, 5, v0")
    a(f"s_sub_u32 s63, {HW}, 2")
    a("v_lshl_add_u32 v5, s63, 1, v5")
    a("v_and_b32 v6, 31, v0")
    a("v_lshlrev_b32 v64, 4, v5")
    a(f"v_mul_u32_u24 v65, {ACCH}, v5")
    a("v_lshl_add_u32 v65, v6, 4, v65")
    a(f"s_lshl_b32 s63, {S_KVH}, 2")
    a("v_add_u32 v5, s63, v5")
    a("v_lshrrev_b32 v66, 4, v6")
    a("v_lshl_add_u32 v66, v5, 1, v66")
    a("v_lshl_add_u32 v66, v66, 5, s62")
    a("v_lshlrev_b32 v66, 8, v66")
    a(f"v_lshl_add_u32 v66, v{VC}, 4, v66")
    a(f"v_add_u32 v66, {PART}, v66")
    a("v_lshl_add_u32 v67, v5, 5, s62")
    a("v_lshlrev_b32 v67, 3, v67")
    a(f"v_add_u32 v67, {LSE}, v67")
    a(f"v_mov_b32 v39, v{HVT}")
    a("s_mov_b32 s64, 1"); a("s_mov_b32 s65, 1")
    a("s_barrier")
    ts(3)
    a(f"ds_read_b128 v[8:11], v64 offset:{MLO}")
    a(f"ds_read_b128 v[12:15], v64 offset:{MLO+64}")
    for w in range(4): a(f"ds_read_b128 {vr(16+4*w)}, v65 offset:{ACC+w*ACCW}")
    a("s_waitcnt lgkmcnt(4)")
    a("v_max3_f32 v34, v8, v9, v10")
    a("v_max_f32 v34, v34, v11")
    for w in range(4): a(f"v_sub_f32 v{8+w}, v{8+w}, v34")
    for w in range(4): a(f"v_exp_f32 v{8+w}, v{8+w}")
    a("v_mul_f32 v35, v8, v12")
    for w in range(1, 4): a(f"v_fmac_f32 v35, v{8+w}, v{12+w}")
    a("v_rcp_f32 v36, v35")
    a("v_log_f32 v38, v35")
    for w in range(4): a(f"v_mul_f32 v{8+w}, v{8+w}, v36")
    a("v_add_f32 v38, v38, v34")
    a("s_waitcnt lgkmcnt(0)")
    for n in range(4): a(f"v_mul_f32 v{40+n}, v8, v{16+n}")
    for w in range(1, 4):
        for n in range(4): a(f"v_fmac_f32 v{40+n}, v{8+w}, v{16+4*w+n}")
    enc([40, 41, 42, 43], HVT)
    a(f"global_store_dwordx4 v66, v[40:43], {sp(P_WS)} sc1")
    a("s_mov_b64 exec, s[64:65]")
    a(f"global_store_dwordx2 v67, v[38:39], {sp(P_WS)} sc1")
    ts(4)
    a("s_branch L_fin")

    a("L_h0:")
    a(f"s_mov_b32 s40, s{P_WO}"); a(f"s_and_b32 s41, s{P_WO+1}, 0xffff"); a(f"s_mov_b32 s42, {4096*1024}"); a("s_mov_b32 s43, 0x20000")
    a("s_lshr_b32 s68, s62, 2")
    a(f"s_lshl_b32 s64, {S_KVH}, 3")
    a("s_add_u32 s68, s68, s64")
    a("s_and_b32 s69, s62, 3")
    a("s_lshl_b32 s56, s68, 16")
    a("s_lshl_b32 s57, s69, 8")
    a("s_add_u32 s56, s56, s57")
    a(f"v_lshlrev_b32 v4, 11, v{VG}")
    a(f"v_lshl_add_u32 v4, v{VC}, 4, v4")
    for kb in range(2):
        for r in range(4):
            for hi in range(2):
                i = hi * 4 + r
                a(f"buffer_load_dwordx4 {vr(WR+32*kb+4*i)}, v4, s[40:43], s56 offen offset:{hi*1024} {wpol}")
            a("s_add_u32 s56, s56, 8192")
    a("s_waitcnt vmcnt(0)")
    for kb in range(2):
        for e in range(8): perm4(WA + 32 * kb + 4 * e, WR + 32 * kb, e)
    a("v_bfe_u32 v5, v0, 4, 1")
    a("v_lshlrev_b32 v5, 4, v5")
    a("v_lshrrev_b32 v6, 5, v0")
    a("v_lshl_add_u32 v5, v6, 3, v5")
    a("s_lshl_b32 s63, s68, 5")
    a("v_add_u32 v8, s63, v5")
    a("v_lshlrev_b32 v8, 8, v8")
    a(f"v_lshl_add_u32 v8, v{VC}, 4, v8")
    a(f"v_add_u32 v8, {PART}, v8")
    a("s_lshr_b32 s63, s68, 1")
    a("s_lshl_b32 s63, s63, 5")
    a("v_add_u32 v9, s63, v5")
    a("v_lshlrev_b32 v9, 3, v9")
    a(f"v_add_u32 v9, {LSE}, v9")
    a("v_and_b32 v10, 31, v0")
    a("v_lshlrev_b32 v10, 3, v10")
    a("v_bfe_u32 v13, v0, 3, 1")
    a("v_lshlrev_b32 v11, 7, v13")
    a(f"v_lshl_add_u32 v11, v{VG}, 4, v11")
    a("s_lshl_b32 s63, s69, 2")
    a("v_lshl_add_u32 v12, v13, 4, s63")
    a(f"v_add_u32 v12, v12, v{VG}")
    a("v_lshl_add_u32 v12, v12, 6, s68")
    a("v_lshlrev_b32 v12, 7, v12")
    a("v_and_b32 v13, 7, v0")
    a("v_lshl_add_u32 v12, v13, 4, v12")
    a(f"v_add_u32 v12, {SP}, v12")
    BW0, BW1 = 192, 32
    for n in range(32): a(f"v_mov_b32 v{BW0+n}, 0")
    for n in range(32): a(f"v_mov_b32 v{BW1+n}, 0")
    ts(3)
    a("s_barrier")
    def c_loads():
        for k in range(4): a(f"global_load_dwordx4 {vr(96+4*k)}, v9, {sp(P_WS)} offset:{16*k} sc1")
        for u in range(8): a(f"global_load_dwordx4 {vr(64+4*u)}, v8, {sp(P_WS)} offset:{u*256} sc1")
    def c_extra(acc):
        for u in range(8): a(f"v_bitop3_b32 v{acc}, v{acc}, v{97+2*u}, v{HVT} bitop3:0xf6")
    poll("c", c_loads, list(range(64, 96)), HVT, sleep_tail, extra=c_extra)
    ts(4)
    Ls = [96 + 2 * u for u in range(8)]
    a(f"v_max3_f32 v7, v{Ls[0]}, v{Ls[1]}, v{Ls[2]}")
    a(f"v_max3_f32 v7, v7, v{Ls[3]}, v{Ls[4]}")
    a(f"v_max3_f32 v7, v7, v{Ls[5]}, v{Ls[6]}")
    a(f"v_max_f32 v7, v7, v{Ls[7]}")
    swap_op("v_max_f32", [7], [6], 32)
    for u in range(8): a(f"v_sub_f32 v{16+u}, v{Ls[u]}, v7")
    for u in range(8): a(f"v_exp_f32 v{16+u}, v{16+u}")
    for n in range(4): a(f"v_mul_f32 v{24+n}, v16, v{64+n}")
    a("v_add_f32 v28, v16, v17")
    for u in range(1, 8):
        for n in range(4): a(f"v_fmac_f32 v{24+n}, v{16+u}, v{64+4*u+n}")
        if u >= 2: a(f"v_add_f32 v28, v28, v{16+u}")
    swap_op("v_add_f32", [24, 25, 26, 27, 28], [64, 65, 66, 67, 68], 32)
    a("v_rcp_f32 v28, v28")
    for n in range(4): a(f"v_mul_f32 v{24+n}, v{24+n}, v28")
    a("v_cvt_pk_bf16_f32 v24, v24, v25")
    a("v_cvt_pk_bf16_f32 v25, v26, v27")
    a(f"ds_write_b64 v10, v[24:25] offset:{OB}")
    bvar_reads([BW0, BW1], 11, [OB, OB + 64])
    for e in range(8):
        a(f"s_waitcnt lgkmcnt({14-2*e})")
        a(f"v_mfma_f32_16x16x32_bf16 v[16:19], {vr(WA+4*e)}, {vr(BW0+4*e)}, {'0' if e == 0 else 'v[16:19]'}")
        a(f"v_mfma_f32_16x16x32_bf16 v[16:19], {vr(WA+32+4*e)}, {vr(BW1+4*e)}, v[16:19]")
    enc([16, 17, 18, 19], HVT)
    a(f"global_store_dwordx4 v12, v[16:19], {sp(P_WS)} sc1")
    a("L_fin:")
    stamp()
    a("L_exit:")
    a("s_endpgm")
    body, n = fix_hazards(a.L)
    body += ['.section .rodata,"a"', ".p2align 6", f".amdhsa_kernel {NAME}_kernel",
             "  .amdhsa_next_free_vgpr 256", "  .amdhsa_next_free_sgpr 100", "  .amdhsa_accum_offset 256",
             "  .amdhsa_group_segment_fixed_size 0", "  .amdhsa_kernarg_size 96", "  .amdhsa_user_sgpr_count 2",
             "  .amdhsa_user_sgpr_kernarg_segment_ptr 1", "  .amdhsa_system_sgpr_workgroup_id_x 1",
             "  .amdhsa_float_denorm_mode_32 3", ".end_amdhsa_kernel"]
    open(path, "w").write("\n".join(body) + "\n")
    return n

if __name__ == "__main__":
    kw = {}
    for t in sys.argv[2:]:
        k, v = t.split("=")
        try: v = int(v)
        except ValueError: v = v.replace("+", " ")
        kw[k] = v
    print("nops inserted:", gen(sys.argv[1], **kw))
```

```python
import sys, struct
from asmlib import Asm, fix_hazards
NAME = "recurrent_scan__gqa_block_cached__glu_gated_geglu__decode"

def f32(x): return "0x%08x" % struct.unpack("<I", struct.pack("<f", x))[0]
LOG2E = 1.4426950408889634

QP, EPOCH, PART, SP, YP, RANK = 0, 0x3F000, 0x40000, 0x140000, 0x1C0000, 0x200000
RSTR = 4096 + 256
STAMP = 256 << 20
QL, RED, CNT, TRG, GATE, HB, ACC, MLO, OB = 0, 1024, 6144, 6160, 6176, 6400, 8192, 16896, 17152
REDW, ACCH, ACCW = 1152, 528, 2112
LDS_BYTES = 17408
P_X, P_K, P_V, P_WQ, P_WO, P_BX, P_WG, P_WU, P_WD, P_OUT, P_DBG, P_WS = [16 + 2 * i for i in range(12)]
def sp(n): return f"s[{n}:{n+1}]"
def vr(n, c=4): return f"v[{n}:{n+c-1}]"
S_WAVE, S_G, S_J, S_B, S_KVH = "s3", "s4", "s5", "s6", "s7"
S_SELLO, S_SELHI, S_SCALE, S_LOG2E = "s50", "s51", "s52", "s53"
S_TAG, S_FF, S_TASK, S_IDX = "s48", "s49", "s46", "s47"
SPIN = 1000000
DPPM = "row_mask:0xf bank_mask:0xf"

def gen(path, D=4, stamps=False, kvpol="nt", wpol="nt", sleep_q=4, sleep0=40, prio=3, thr=32, DS=4, pat=1,
        trgn=4, spin=SPIN, sleep_c=0, sleep_s=0, early=0, xl=0, loc1=0, locq=0, nre=2, touch=1, b0pos=4, DF=0,
        dry=0, qdelay=40, qsmem=0, noq=0, tstamp=0, rank=0, DL=7, D1=11, D2=15, R0=8, R1=20, R2=27, rstep=1, rop='ls', rpol='sc1', rpriv=0, rs=RSTR, edelay=0, nodefer_ld=0, wfirst=1, DP='', DE=6, nfe=3, padto=0, opol='', b2a=0, DT=4, sprio=0, D0=0, c1=0, fdelay=1, gatef=1, spad=0, peel=1, post=1, warm=0, fsl=0):
    a = Asm()
    a(f"; @launch grid=(256,1,1) block=(512,1,1) lds={LDS_BYTES}")
    if stamps: a("; STAMPX 2048"); a("; V8"); a(f"; XL{xl}")
    if tstamp: a("; TSTAMP 1024")
    a('.amdgcn_target "amdgcn-amd-amdhsa--gfx950"')
    a(".text")
    a(f".globl {NAME}_kernel")
    a(".p2align 8")
    a(f".type {NAME}_kernel,@function")
    a(f"{NAME}_kernel:")
    a("s_cmp_ge_u32 s2, 256")
    a("s_cbranch_scc1 L_exit")
    if stamps:
        a("s_memrealtime s[80:81]")
        for k in range(82, 92): a(f"s_mov_b32 s{k}, 0")
    if padto: a("s_memrealtime s[80:81]")
    a("s_load_dwordx16 s[16:31], s[0:1], 0")
    a("s_load_dwordx8 s[32:39], s[0:1], 64")
    a("v_lshrrev_b32 v1, 6, v0")
    a("v_and_b32 v0, 63, v0")
    a(f"v_readfirstlane_b32 {S_WAVE}, v1")
    a(f"s_lshr_b32 {S_B}, s2, 7")
    if xl:
        a(f"s_and_b32 {S_KVH}, s2, 7")
        a(f"s_bfe_u32 {S_J}, s2, 0x40003")
    else:
        a(f"s_bfe_u32 {S_KVH}, s2, 0x30004")
        a(f"s_and_b32 {S_J}, s2, 15")
    a(f"s_cmp_ge_u32 {S_WAVE}, 4")
    a("s_cbranch_scc1 L_helper")

    hmode = [False]
    def consts():
        a(f"s_mov_b32 {S_SELLO}, 0x05040100")
        a(f"s_mov_b32 {S_SELHI}, 0x07060302")

    def perm4(dst, src, e):
        sel = S_SELHI if e & 1 else S_SELLO
        for u in range(4):
            a(f"v_perm_b32 v{dst+u}, v{src+4*(2*u+1)+(e>>1)}, v{src+4*(2*u)+(e>>1)}, {sel}")

    def perm_mfma(src, B, acc, tmp, first):
        perm4(tmp, src, 0)
        for e in range(8):
            if e + 1 < 8: perm4(tmp + 4 * ((e + 1) & 3), src, e + 1)
            c = "0" if first else vr(acc + 4 * e)
            a(f"v_mfma_f32_16x16x32_bf16 {vr(acc+4*e)}, {vr(tmp+4*(e&3))}, {vr(B)}, {c}")

    def bvar_reads(bv, addr, off):
        for e in range(8):
            m = 0x01010101 << e
            a(f"s_mov_b32 exec_lo, 0x{m:08x}")
            a(f"s_mov_b32 exec_hi, 0x{m:08x}")
            a(f"ds_read_b128 {vr(bv+4*e)}, v{addr} offset:{off}")
        a("s_mov_b64 exec, -1")

    def acc_to_lds(acc, addr):
        for r in range(4):
            for e in range(0, 8, 2):
                a(f"ds_write2_b32 v{addr}, v{acc+4*e+r}, v{acc+4*(e+1)+r} offset0:{8*r+e} offset1:{8*r+e+1}")

    def swap_op(op, regs, tmps, which):
        for r, t in zip(regs, tmps): a(f"v_mov_b32 v{t}, v{r}")
        for r, t in zip(regs, tmps): a(f"v_permlane{which}_swap_b32 v{r}, v{t}")
        for r, t in zip(regs, tmps): a(f"{op} v{r}, v{r}, v{t}")

    def ror(op, regs, sh):
        for r in regs: a(f"{op}_dpp v{r}, v{r}, v{r} row_ror:{sh} {DPPM}")

    def allreduce_add(regs, tmps):
        for sh in (8, 4, 2, 1): ror("v_add_f32", regs, sh)
        swap_op("v_add_f32", regs, tmps, 16)
        swap_op("v_add_f32", regs, tmps, 32)

    def rne(dst, src):
        a(f"v_cvt_pk_bf16_f32 v{dst}, v{src}, v{src}")
        a(f"v_and_b32 v{dst}, 0xffff0000, v{dst}")

    def unpack8(dst, src):
        for n in range(4):
            a(f"v_lshlrev_b32 v{dst+2*n}, 16, v{src+n}")
            a(f"v_and_b32 v{dst+2*n+1}, 0xffff0000, v{src+n}")

    def rne_pairs(regs, tmps):
        for i in range(0, len(regs), 2): a(f"v_cvt_pk_bf16_f32 v{tmps[i//2]}, v{regs[i]}, v{regs[i+1]}")
        for i in range(0, len(regs), 2):
            a(f"v_lshlrev_b32 v{regs[i]}, 16, v{tmps[i//2]}")
            a(f"v_and_b32 v{regs[i+1]}, 0xffff0000, v{tmps[i//2]}")

    VT = 252
    def enc(regs4):
        for n, r in enumerate(regs4): a(f"v_bfi_b32 v{r}, {S_FF}, v{VT+(n&3)}, v{r}")

    def chk4(base, first, A0=6, A1=7):
        for n in range(4):
            acc = A0 if n < 2 else A1
            if first and n in (0, 2): a(f"v_xor_b32 v{acc}, v{base+n}, v{VT+n}")
            else: a(f"v_bitop3_b32 v{acc}, v{acc}, v{base+n}, v{VT+n} bitop3:0xf6")

    def poll_head(tag, cnt=None):
        a(f"s_mov_b32 s67, {spin if cnt is None else cnt}")
        a(f"L_p{tag}:")
    def poll_tail(tag, sleep, full=None, A0=6, A1=7, masked=False, onfail=None):
        a(f"v_or_b32 v{A0}, v{A0}, v{A1}")
        if full is None: a(f"v_and_b32 v{A0}, {S_FF}, v{A0}")
        else: a(f"v_and_or_b32 v{A0}, v{A0}, {S_FF}, v{full}")
        a(f"v_cmp_ne_u32 vcc, 0, v{A0}")
        a(f"s_cbranch_vccz L_g{tag}")
        if onfail: onfail()
        if masked: a("s_mov_b64 exec, vcc")
        a("s_sub_u32 s67, s67, 1")
        if sleep: a(f"s_sleep {sleep}")
        a(f"s_cbranch_scc0 L_p{tag}")
        a(f"L_g{tag}:")
        if masked: a("s_mov_b64 exec, -1")

    def ts(k):
        if stamps and not (early and not hmode[0]):
            a(f"s_memrealtime s[{82+2*k}:{83+2*k}]")
            a("s_waitcnt lgkmcnt(0)")

    def stamp():
        if not stamps: return
        a("s_memrealtime s[92:93]")
        a("s_lshl_b32 s94, s2, 3")
        a(f"s_add_u32 s94, s94, {S_WAVE}")
        a("s_lshl_b32 s94, s94, 5")
        a(f"s_add_u32 s94, s94, {STAMP}")
        a("s_getreg_b32 s95, hwreg(HW_REG_XCC_ID)")
        a("s_and_b32 s95, s95, 15")
        a("s_getreg_b32 s96, hwreg(HW_REG_HW_ID)")
        a("s_lshl_b32 s96, s96, 4")
        a("s_or_b32 s95, s95, s96")
        a("s_waitcnt lgkmcnt(0)")
        a("s_mov_b64 exec, 1")
        a("v_mov_b32 v4, s80"); a("v_mov_b32 v5, s92"); a("v_mov_b32 v6, s95"); a("v_mov_b32 v7, s82")
        a("v_mov_b32 v8, s84"); a("v_mov_b32 v9, s86"); a("v_mov_b32 v10, s88"); a("v_mov_b32 v11, s90")
        a("v_mov_b32 v1, s94")
        a(f"global_store_dwordx4 v1, v[4:7], {sp(P_WS)}")
        a(f"global_store_dwordx4 v1, v[8:11], {sp(P_WS)} offset:16")

    VOK, VOV, VM, VL = 1, 2, 3, 4
    S0, Q0, AC = 8, 16, 32
    ST = [64, 128, 192]
    PATS = {0: "wwjjjjitttt", 1: "wwjttttjjji", 2: "wwittttjjjj", 3: "wwjjttttjji", 4: "wwtjtttjjji", 5: "jwwttttjjji"}
    ps = PATS.get(pat, pat)
    bits = {c: [12 + i for i, ch in enumerate(ps) if ch == c] for c in "wjti"}
    TB = bits["i"][0]
    TMASK = sum(1 << b for b in bits["t"])
    tcontig = bits["t"] == list(range(bits["t"][0], bits["t"][0] + 4))
    def runs(bl):
        r = []
        for k, b in enumerate(bl):
            if r and r[-1][2] + r[-1][1] == b: r[-1][1] += 1
            else: r.append([k, 1, b])
        return r
    if sprio:
        a(f"s_cmp_lt_u32 {S_WAVE}, 2")
        a("s_cbranch_scc1 L_pr0")
        a("s_setprio 1")
        a("L_pr0:")
    a("v_and_b32 v5, 1, v0")
    a("v_lshlrev_b32 v5, 4, v5")
    a("v_bfe_u32 v6, v0, 1, 1")
    a("v_lshl_add_u32 v5, v6, 10, v5")
    a("v_bfe_u32 v6, v0, 2, 2")
    a("v_lshl_add_u32 v5, v6, 8, v5")
    a("v_lshrrev_b32 v6, 4, v0")
    a(f"v_lshl_add_u32 v{VOK}, v6, 5, v5")
    a(f"v_lshlrev_b32 v{VOV}, 4, v0")
    a(f"s_lshl_b32 s62, {S_B}, 3")
    a(f"s_add_u32 s62, s62, {S_KVH}")
    a("s_lshl_b32 s62, s62, 23")
    for src, bl in ((S_J, bits["j"]), (S_WAVE, bits["w"])):
        for lo, wd, dst in runs(bl):
            a(f"s_bfe_u32 s61, {src}, {lo | (wd << 16)}")
            a(f"s_lshl_b32 s61, s61, {dst}")
            a("s_add_u32 s62, s62, s61")
    if not tcontig:
        a("s_mov_b32 s60, s62")
        a("s_mov_b32 s59, 0")
    a(f"s_add_u32 s63, s62, {1<<TB}")
    a(f"s_mov_b32 s10, {128<<20}"); a("s_mov_b32 s11, 0x20000")
    a("s_mov_b32 s14, s10"); a("s_mov_b32 s15, s11")
    a("s_waitcnt lgkmcnt(0)")
    if early: a("s_memrealtime s[82:83]")
    a(f"s_mov_b32 s8, s{P_K}"); a(f"s_and_b32 s9, s{P_K+1}, 0xffff")
    a(f"s_mov_b32 s12, s{P_V}"); a(f"s_and_b32 s13, s{P_V+1}, 0xffff")

    def tile_loads(st, hook=None, order=None):
        L = []
        for T in range(2):
            for s in range(4):
                L.append(f"buffer_load_dwordx4 {vr(st+16*T+4*s)}, v{VOK}, s[8:11], s{62+T} offen offset:{(s>>1)*2048+(s&1)*128} {kvpol}")
        for T in range(2):
            for r in range(4):
                L.append(f"buffer_load_dwordx4 {vr(st+32+16*T+4*r)}, v{VOV}, s[12:15], s{62+T} offen offset:{r*1024} {kvpol}")
        for n, i in enumerate(order or range(16)):
            a(L[i])
            if hook: hook(n + 1)
    def adv():
        if tcontig:
            a(f"s_add_u32 s62, s62, {1<<bits['t'][0]}")
            a(f"s_add_u32 s63, s63, {1<<bits['t'][0]}")
        else:
            a(f"s_or_b32 s59, s59, {(~TMASK) & 0xffffffff}")
            a("s_add_u32 s59, s59, 1")
            a(f"s_and_b32 s59, s59, {TMASK}")
            a("s_add_u32 s62, s60, s59")
            a(f"s_add_u32 s63, s62, {1<<TB}")

    cnt = [0]
    def pro_hook(n):
        cnt[0] += 1
        if cnt[0] == b0pos: a("s_barrier")
        if cnt[0] > max(D, D0) and cnt[0] < thr:
            a(f"s_waitcnt vmcnt({max(D, 2*D0 - cnt[0]) if D0 else D})")
        elif cnt[0] >= thr and DT and cnt[0] < 48:
            a(f"s_waitcnt vmcnt({DT})")
        if early and cnt[0] == b0pos: a("s_memrealtime s[84:85]")
        if early and cnt[0] == D + 1: a("s_memrealtime s[86:87]")
        if early and cnt[0] == D + 8: a("s_memrealtime s[88:89]")
        if early and cnt[0] == D + 16: a("s_memrealtime s[90:91]")
    def capture(f):
        n = len(a.L); f(); L = a.L[n:]; del a.L[n:]; return L
    def init_regs():
        consts()
        for i in range(32): a(f"v_mov_b32 v{AC+i}, 0")
        a(f"v_mov_b32 v{VM}, 0xff7fffff")
        a(f"v_mov_b32 v{VL}, 0")
        a(f"s_mov_b32 {S_SCALE}, {f32(128 ** -0.5)}")
        a(f"s_mov_b32 {S_LOG2E}, {f32(LOG2E)}")
        a("v_and_b32 v7, 3, v0")
        a("v_sub_u32 v8, 3, v7")
        a("s_mov_b32 s66, 0xf0f0f0f0"); a("s_mov_b32 s67, 0xf0f0f0f0")
        a("v_cndmask_b32 v8, v7, v8, s[66:67]")
        a("v_lshlrev_b32 v8, 8, v8")
        a("v_lshl_add_u32 v8, v6, 5, v8")
        a("v_bfe_u32 v9, v0, 3, 1")
        a("v_lshl_add_u32 v8, v9, 4, v8")
        for i in range(16): a(f"v_mov_b32 v{Q0+i}, 0")
        a(f"s_mul_i32 s64, {S_WAVE}, {ACCW}")
        a(f"s_add_u32 s64, s64, {ACC}")
        a(f"v_mul_u32_u24 v5, {ACCH}, v7")
        a("v_lshl_add_u32 v5, v6, 7, v5")
        a("v_add_u32 v5, s64, v5")
        a(f"s_lshl_b32 s64, {S_WAVE}, 2")
        a(f"s_add_u32 s64, s64, {MLO}")
        a("v_lshl_add_u32 v6, v7, 4, s64")
        a(f"v_mov_b32 v0, {TRG}")
        a("s_mov_b32 s61, 0")
        a("s_mov_b32 s64, 0x000f000f"); a("s_mov_b32 s65, 0x000f000f")
    def q_read():
        a("s_not_b64 exec, s[66:67]")
        for s in range(2): a(f"ds_read_b128 {vr(Q0+4*s)}, v8 offset:{QL+s*128}")
        a("s_mov_b64 exec, s[66:67]")
        for s in range(2): a(f"ds_read_b128 {vr(Q0+8+4*s)}, v8 offset:{QL+s*128}")
        a("s_mov_b64 exec, -1")
        a("s_waitcnt lgkmcnt(0)")

    INIT = capture(init_regs)
    def pro_hook2(n):
        pro_hook(n)
        c = cnt[0]
        if 6 <= c < 22:
            k = c - 6
            a.L.extend(INIT[len(INIT) * k // 16: len(INIT) * (k + 1) // 16])
        if c == 31: a("ds_read_b32 v9, v0 offset:8")
        if c1 and c == c1: a("ds_read_b32 v10, v0 offset:8")
    for t in range(2):
        tile_loads(ST[t], pro_hook2, [0, 8, 4, 12, 1, 5, 9, 13, 2, 3, 6, 7, 10, 11, 14, 15] if (touch and t == 0) else None)
        adv()
    ts(0)
    a("s_waitcnt lgkmcnt(0)")
    a("v_readfirstlane_b32 s60, v9") if tcontig else a("v_readfirstlane_b32 s58, v9")
    a(f"s_cmp_lt_u32 {'s60' if tcontig else 's58'}, 4")
    a("s_cbranch_scc1 L_slowq")
    if c1: a("v_readfirstlane_b32 s58, v10")
    q_read()
    ts(1)
    if c1:
        a("s_cmp_ge_u32 s58, 4")
        a("s_cbranch_scc1 L_boost")
    a("s_branch L_ent0")
    a("L_slowq:")
    tile_loads(ST[2], pro_hook)
    adv()
    a(f"s_mov_b32 s68, {spin*8}")
    a("L_qw:")
    a("ds_read_b32 v9, v0 offset:8")
    a("s_sub_u32 s68, s68, 1")
    a("s_cbranch_scc1 L_qx")
    a("s_waitcnt lgkmcnt(0)")
    a("v_readfirstlane_b32 s58, v9")
    a("s_cmp_lt_u32 s58, 4")
    a("s_cbranch_scc1 L_qw")
    a("L_qx:")
    q_read()
    ts(1)

    def compute(k, waitK, waitV):
        st = ST[k]
        K = st; V = st + 32
        waitK()
        for X in range(2):
            for s in range(2):
                for U in range(2):
                    c = "0" if (X == 0 and s == 0) else vr(S0 + 4 * U)
                    a(f"v_mfma_f32_16x16x32_bf16 {vr(S0+4*U)}, {vr(K+16*X+8*U+4*s)}, {vr(Q0+8*X+4*s)}, {c}")
        x = [S0 + 2 * i for i in range(4)]
        tp = [K + i for i in range(4)]
        P = K + 4; AL = K + 8; MC = K + 10; T2 = K + 11; TMP = K + 16
        for i in x: a(f"v_add_f32_dpp v{i}, v{i+1}, v{i} row_ror:8 {DPPM}")
        rne_pairs(x, tp)
        for i in x: a(f"v_mul_f32 v{i}, {S_SCALE}, v{i}")
        rne_pairs(x, tp)
        a(f"v_max3_f32 v7, v{x[0]}, v{x[1]}, v{x[2]}")
        a(f"v_max3_f32 v7, v7, v{x[3]}, v{VM}")
        a(f"v_max_f32_dpp v7, v7, v7 row_half_mirror {DPPM}")
        swap_op("v_max_f32", [7], [T2], 16)
        swap_op("v_max_f32", [7], [T2], 32)
        a(f"v_sub_f32 v{AL}, v{VM}, v7")
        a(f"v_mul_f32 v{MC}, {S_LOG2E}, v7")
        a(f"v_mul_f32 v{AL}, {S_LOG2E}, v{AL}")
        a(f"v_mov_b32 v{VM}, v7")
        a(f"v_exp_f32 v{AL}, v{AL}")
        for i in x: a(f"v_fma_f32 v{i}, v{i}, {S_LOG2E}, -v{MC}")
        for i in x: a(f"v_exp_f32 v{i}, v{i}")
        for i in range(8): a(f"v_pk_mul_f32 {vr(AC+2*i,2)}, {vr(AC+2*i,2)}, {vr(AL,2)} op_sel_hi:[1,0]")
        for p in range(2): a(f"v_cvt_pk_bf16_f32 v{P+p}, v{x[2*p]}, v{x[2*p+1]}")
        for i in range(8, 16): a(f"v_pk_mul_f32 {vr(AC+2*i,2)}, {vr(AC+2*i,2)}, {vr(AL,2)} op_sel_hi:[1,0]")
        for p in range(2): a(f"v_mov_b32_dpp v{P+2+p}, v{P+p} row_half_mirror {DPPM}")
        a(f"v_fma_f32 v{VL}, v{VL}, v{AL}, v{x[0]}")
        a(f"v_add_f32 v{x[1]}, v{x[1]}, v{x[2]}")
        a(f"v_add_f32 v{VL}, v{VL}, v{x[3]}")
        a(f"v_add_f32 v{VL}, v{VL}, v{x[1]}")
        waitV()
        perm_mfma(V, P, AC, TMP, False)

    def tst():
        if tstamp:
            a("s_memrealtime s[76:77]")
            a("s_mov_b32 m0, s61")
            a("s_waitcnt lgkmcnt(0)")
            a("v_writelane_b32 v0, s76, m0")

    def inter(k, depth=None):
        C = capture(lambda: compute(k, lambda: None, lambda: None))
        Ld = capture(lambda: tile_loads(ST[(k+2)%3]))
        if k == 1: a("s_waitcnt vmcnt(24)")
        n = len(C)
        pos = 0
        for i in range(16):
            dd = depth if depth else (int(str(DP)[i % len(str(DP))]) if DP else DS)
            if wfirst: a(f"s_waitcnt vmcnt({dd})")
            a.L.append(Ld[i])
            end = (n * (i + 1)) // 16
            a.L.extend(C[pos:end]); pos = end
            if not wfirst: a(f"s_waitcnt vmcnt({DS})")
        adv()
        a("s_add_u32 s61, s61, 1")
        tst()

    a("L_n0:")
    def lad(n0, tag):
        def f():
            a("s_cmp_eq_u32 s61, 0")
            a(f"s_cbranch_scc1 L_a{tag}")
            a(f"s_waitcnt vmcnt({n0})")
            a(f"L_a{tag}:")
            a("s_waitcnt vmcnt(32)")
        return f
    def ml_out():
        a(f"v_add_f32_dpp v{VL}, v{VL}, v{VL} row_half_mirror {DPPM}")
        swap_op("v_add_f32", [VL], [7], 16)
        swap_op("v_add_f32", [VL], [7], 32)
        a(f"v_mul_f32 v{VM}, {S_LOG2E}, v{VM}")
        a("s_mov_b64 exec, s[64:65]")
        a(f"ds_write2_b32 v6, v{VM}, v{VL} offset0:0 offset1:16")
    def ladv():
        a("s_cmp_eq_u32 s61, 0")
        a("s_cbranch_scc1 L_av")
        ml_out()
        a("s_mov_b64 exec, -1")
        a("s_waitcnt lgkmcnt(0)")
        a("s_barrier")
        a("s_waitcnt vmcnt(0)")
        a("L_av:")
        a("s_waitcnt vmcnt(32)")
    compute(0, lad(8, "k"), ladv if b2a else lad(0, "v"))
    a("s_add_u32 s61, s61, 1")
    tst()
    a("s_cmp_eq_u32 s61, 16")
    a("s_cbranch_scc1 L_sdone")
    a("L_loop:")
    if not DE:
        inter(1)
        a("s_cmp_eq_u32 s61, 14")
        a("s_cbranch_scc1 L_n2")
        inter(2)
        a("L_ent0:")
        inter(0)
        a("s_branch L_loop")
    else:
        inter(1)
        if nfe == 3:
            a("s_cmp_eq_u32 s61, 11"); a("s_cbranch_scc1 L_fe")
        a("L_ent2:")
        inter(2)
        if nfe == 2:
            a("s_cmp_eq_u32 s61, 12"); a("s_cbranch_scc1 L_fe")
        a("L_ent0:")
        inter(0)
        if nfe == 1:
            a("s_cmp_lg_u32 s61, 13"); a("s_cbranch_scc1 L_loop")
        else:
            a("s_branch L_loop")
        a("L_fe:")
        if nfe >= 3: inter(2, DE)
        a("L_boost:")
        if nfe >= 2: inter(0, DE)
        inter(1, DE)
        if c1:
            a("s_cmp_eq_u32 s61, 2")
            a("s_cbranch_scc1 L_ent2")
    a("L_n2:")
    a("s_mov_b64 exec, 1")
    a("v_mov_b32 v7, 1")
    a("ds_add_u32 v0, v7")
    a("s_mov_b64 exec, -1")
    compute(2, lambda: a("s_waitcnt vmcnt(16)"), lambda: None)
    a("s_add_u32 s61, s61, 1")
    tst()
    a("s_branch L_n0")
    a("L_sdone:")
    ts(2)
    if b2a: a("s_mov_b64 exec, s[64:65]")
    else: ml_out()
    for e in range(8): a(f"ds_write_b128 v5, {vr(AC+4*e)} offset:{16*e}")
    a("s_waitcnt lgkmcnt(0)")
    a("s_barrier")
    ts(3)
    if tstamp:
        a("s_lshl_b32 s94, s2, 2")
        a(f"s_add_u32 s94, s94, {S_WAVE}")
        a("s_lshl_b32 s94, s94, 6")
        a(f"s_add_u32 s94, s94, {STAMP + (1 << 20) - 4}")
        a("s_mov_b64 exec, 0x1fffe")
        a(f"v_lshrrev_b32 v7, 2, v{VOV}")
        a("v_add_u32 v7, s94, v7")
        a(f"global_store_dword v7, v0, {sp(P_WS)}")
    a("s_branch L_fin")

    hmode[0] = True
    a("L_helper:")
    if prio: a(f"s_setprio {prio}")
    HW = "s54"
    VG, VC = 1, 2
    a("v_lshlrev_b32 v6, 2, v0")
    a("v_mov_b32 v5, 0")
    a(f"ds_write_b32 v6, v5 offset:{CNT}")
    a(f"s_sub_u32 {HW}, {S_WAVE}, 4")
    a(f"s_lshl_b32 {S_IDX}, {S_B}, 4")
    a(f"s_add_u32 {S_IDX}, {S_IDX}, {S_J}")
    if xl:
        a(f"s_lshl_b32 {S_TASK}, {S_KVH}, 4")
        a(f"s_add_u32 {S_TASK}, {S_TASK}, {S_J}")
        a(f"s_mul_i32 s55, {S_KVH}, 14")
        a(f"s_add_u32 s55, s55, {S_J}")
        a("s_add_u32 s55, s55, 128")
        a(f"s_cmp_lt_u32 {S_J}, 14")
        a("s_cselect_b32 s55, s55, 255")
        a(f"s_cmp_eq_u32 {S_B}, 0")
        a(f"s_cselect_b32 {S_TASK}, {S_TASK}, s55")
    else:
        a(f"s_mov_b32 {S_TASK}, s2")
    a(f"v_lshrrev_b32 v{VG}, 4, v0")
    a(f"v_and_b32 v{VC}, 15, v0")
    a("v_lshlrev_b32 v3, 4, v0")
    a(f"s_and_b32 s55, {S_TASK}, 3")
    a("s_lshl_b32 s55, s55, 7")
    a(f"s_lshl_b32 s56, {HW}, 5")
    a("s_add_u32 s55, s55, s56")
    a(f"s_sub_u32 s57, {S_TASK}, 128")
    a("s_lshr_b32 s58, s57, 3")
    a(f"s_lshr_b32 s59, {S_TASK}, 2")
    a(f"s_cmp_lt_u32 {S_TASK}, 128")
    a("s_cselect_b32 s58, s59, s58")
    a("s_movk_i32 s59, 3584")
    a("s_cselect_b32 s59, 8192, s59")
    a("s_lshl_b32 s42, s59, 9")
    a("s_mov_b32 s43, 0x20000")
    X0, XB, WR, HACC, HT = 8, 16, 64, 32, 224
    a("v_and_b32 v4, 1, v0")
    a("v_lshlrev_b32 v4, 10, v4")
    a(f"v_lshl_add_u32 v4, v{VG}, 4, v4")
    a("s_lshl_b32 s56, s55, 1")
    a("v_add_u32 v4, s56, v4")
    a(f"v_lshlrev_b32 v5, 3, v{VG}")
    a("v_mul_lo_u32 v5, v5, s59")
    a(f"v_lshl_add_u32 v5, v{VC}, 4, v5")
    a("s_mul_i32 s56, s55, s59")
    a("s_lshl_b32 s58, s58, 8")
    a("s_add_u32 s56, s56, s58")
    a("s_waitcnt lgkmcnt(0)")
    a("s_barrier")
    a(f"s_load_dword {S_TAG}, {sp(P_WS)}, {EPOCH}")
    a("s_bitcmp1_b32 s57, 2")
    a(f"s_cselect_b32 s40, s{P_WU}, s{P_WG}")
    a(f"s_cselect_b32 s41, s{P_WU+1}, s{P_WG+1}")
    a(f"s_cmp_lt_u32 {S_TASK}, 128")
    a(f"s_cselect_b32 s40, s{P_WQ}, s40")
    a(f"s_cselect_b32 s41, s{P_WQ+1}, s41")
    a("s_and_b32 s41, s41, 0xffff")
    a(f"s_cmp_ge_u32 {S_TASK}, 240")
    a("s_cbranch_scc1 L_nopre0")
    a(f"global_load_dwordx4 {vr(X0)}, v3, {sp(P_X)}")
    a(f"buffer_load_dwordx4 {vr(WR)}, v5, s[40:43], s56 offen {wpol}")
    a(f"global_load_dwordx4 {vr(X0+4)}, v3, {sp(P_X)} offset:1024")
    a(f"global_load_dwordx4 {vr(XB)}, v4, {sp(P_X)}")
    for i in range(1, 8):
        a("s_add_u32 s56, s56, s59")
        a(f"buffer_load_dwordx4 {vr(WR+4*i)}, v5, s[40:43], s56 offen {wpol}")
    a("L_nopre0:")
    consts()
    a(f"s_movk_i32 {S_FF}, 0xff")
    a("s_mov_b32 s71, 0")
    def mk_tag():
        a("s_waitcnt lgkmcnt(0)")
        a(f"s_mul_i32 {S_TAG}, {S_TAG}, 1664525")
        a(f"s_add_u32 {S_TAG}, {S_TAG}, 1013904223")
        a(f"v_mov_b32 v{VT}, {S_TAG}")
        for n in range(1, 4): a(f"v_lshrrev_b32 v{VT+n}, {8*n}, v{VT}")
    a(f"s_cmp_ge_u32 {S_TASK}, 240")
    a("s_cbranch_scc1 L_nopre")
    a("s_waitcnt vmcnt(7)")
    U0, U1 = 144, 152
    unpack8(U0, X0); unpack8(U1, X0 + 4)
    for U, s in ((U0, 24), (U1, 25)):
        a(f"v_add_f32 v{s}, v{U}, v{U+1}")
        for n in range(2, 8): a(f"v_add_f32 v{s}, v{s}, v{U+n}")
    allreduce_add([24, 25], [26, 27])
    a(f"v_mul_f32 v24, {f32(1/512)}, v24"); a(f"v_mul_f32 v25, {f32(1/512)}, v25")
    for U, s, d in ((U0, 24, 28), (U1, 25, 29)):
        for n in range(8): a(f"v_sub_f32 v{U+n}, v{U+n}, v{s}")
        a(f"v_mul_f32 v{d}, v{U}, v{U}")
        for n in range(1, 8): a(f"v_fmac_f32 v{d}, v{U+n}, v{U+n}")
    allreduce_add([28, 29], [26, 27])
    a("s_mov_b32 s64, 0xaaaaaaaa"); a("s_mov_b32 s65, 0xaaaaaaaa")
    a("v_cndmask_b32 v24, v24, v25, s[64:65]")
    a("v_cndmask_b32 v28, v28, v29, s[64:65]")
    a(f"v_mul_f32 v28, {f32(1/512)}, v28")
    rne(24, 24); rne(28, 28)
    a(f"v_add_f32 v28, {f32(1e-5)}, v28")
    rne(28, 28)
    a("v_sqrt_f32 v28, v28")
    rne(28, 28)
    a("v_rcp_f32 v29, v28")
    unpack8(U0, XB)
    xs = [U0 + n for n in range(8)]
    for r in xs: a(f"v_sub_f32 v{r}, v{r}, v24")
    rne_pairs(xs, [160 + n for n in range(8)])
    for n, r in enumerate(xs): a(f"v_mul_f32 v{160+n}, v{r}, v29")
    for n, r in enumerate(xs): a(f"v_fma_f32 v{r}, -v{160+n}, v28, v{r}")
    for n, r in enumerate(xs): a(f"v_fma_f32 v{r}, v{r}, v29, v{160+n}")
    for n in range(4): a(f"v_cvt_pk_bf16_f32 v{XB+n}, v{xs[2*n]}, v{xs[2*n+1]}")
    a(f"s_mul_i32 s63, {HW}, {REDW}")
    a(f"s_add_u32 s63, s63, {RED}")
    a(f"v_lshl_add_u32 v5, v{VC}, 2, v{VG}")
    a("v_mul_u32_u24 v5, 144, v5")
    a("v_add_u32 v5, s63, v5")
    a(f"s_lshl_b32 s63, {HW}, 2")
    a("v_mov_b32 v6, s63")
    a("v_mov_b32 v7, 1")
    a("s_mov_b32 s64, 0x00030003"); a("s_mov_b32 s65, 0x00030003")
    mk_tag()
    a("s_waitcnt vmcnt(0)")
    ts(0)
    perm_mfma(WR, XB, HACC, HT, True)
    a("s_mov_b64 exec, s[64:65]")
    acc_to_lds(HACC, 5)
    a(f"ds_write_b32 v6, v7 offset:{CNT}")
    a("s_mov_b64 exec, -1")
    a(f"s_cmp_lg_u32 {HW}, 3")
    a("s_cbranch_scc1 L_pre_done")
    a("v_mov_b32 v6, 0")
    a("v_lshrrev_b32 v8, 3, v0")
    a("v_lshl_add_u32 v8, v8, 4, v3")
    a(f"s_lshl_b32 s63, {S_TASK}, 10")
    a("v_add_u32 v60, s63, v3")
    a(f"s_mov_b32 s67, {spin}")
    a("L_rpoll:")
    a(f"ds_read_b128 v[28:31], v6 offset:{CNT}")
    for w in range(4): a(f"ds_read_b128 {vr(32+4*w)}, v8 offset:{RED+w*REDW}")
    a("s_waitcnt lgkmcnt(4)")
    a("v_and_b32 v7, v28, v29")
    a("v_and_b32 v7, v7, v30")
    a("v_and_b32 v7, v7, v31")
    a("v_cmp_ne_u32 vcc, 1, v7")
    a("s_cbranch_vccz L_rgo")
    a("s_sub_u32 s67, s67, 1")
    a("s_cbranch_scc0 L_rpoll")
    a("L_rgo:")
    a("s_waitcnt lgkmcnt(0)")
    for n in range(4):
        a(f"v_add_f32 v{32+n}, v{32+n}, v{36+n}")
        a(f"v_add_f32 v{40+n}, v{40+n}, v{44+n}")
    for n in range(4): a(f"v_add_f32 v{56+n}, v{32+n}, v{40+n}")
    enc([56, 57, 58, 59])
    if locq:
        a(f"global_store_dwordx4 v60, v[56:59], {sp(P_WS)}")
        a(f"s_mov_b32 s71, {locq}")
    else:
        a(f"global_store_dwordx4 v60, v[56:59], {sp(P_WS)} sc1")
    a("s_branch L_pre_done")
    a("L_nopre:")
    mk_tag()
    if sleep0: a(f"s_sleep {sleep0}")
    a("L_pre_done:")
    ts(1)
    a(f"s_lshl_b32 s63, {S_KVH}, 2")
    a(f"s_add_u32 s63, s63, {HW}")
    a("s_lshl_b32 s64, s63, 12")
    a(f"s_lshl_b32 s65, {S_B}, 9")
    a("s_add_u32 s64, s64, s65")
    a("v_lshrrev_b32 v5, 5, v0")
    a("v_lshl_add_u32 v5, v5, 10, s64")
    a("v_and_b32 v8, 31, v0")
    a("v_lshl_add_u32 v5, v8, 4, v5")
    a(f"s_lshl_b32 s64, {HW}, 8")
    a("v_lshl_add_u32 v8, v8, 3, s64")
    def restore(tag, stores):
        def f():
            a("s_cmp_eq_u32 s71, 0")
            a(f"s_cbranch_scc1 L_nr{tag}")
            a("s_sub_u32 s71, s71, 1")
            a("s_cmp_lg_u32 s71, 0")
            a(f"s_cbranch_scc1 L_nr{tag}")
            a("s_mov_b64 exec, -1")
            stores()
            a(f"L_nr{tag}:")
        return f
    def q_wt(): a(f"global_store_dwordx4 v60, v[56:59], {sp(P_WS)} sc1")
    if qdelay: a(f"s_sleep {qdelay}")
    if qsmem:
        a(f"s_lshl_b32 s63, s63, 12")
        a("s_add_u32 s63, s63, s65")
        a(f"s_add_u32 s72, s{P_WS}, s63")
        a(f"s_addc_u32 s73, s{P_WS+1}, 0")
        a(f"s_mov_b32 s67, {spin}")
        a("L_sq:")
        for k in range(4): a(f"s_load_dword s{76+k}, s[72:73], {k*1024} glc")
        a("s_waitcnt lgkmcnt(0)")
        for k in range(4): a(f"s_xor_b32 s{76+k}, s{76+k}, {S_TAG}")
        a("s_or_b32 s76, s76, s77"); a("s_or_b32 s78, s78, s79"); a("s_or_b32 s76, s76, s78")
        a("s_and_b32 s76, s76, 0xff")
        a("s_cbranch_scc0 L_sqg")
        a("s_sub_u32 s67, s67, 1")
        a(f"s_sleep {qsmem}")
        a("s_cbranch_scc0 L_sq")
        a("L_sqg:")
    poll_head("q", 0 if noq else None)
    a(f"global_load_dwordx4 v[32:35], v5, {sp(P_WS)} sc1")
    a(f"global_load_dwordx4 v[36:39], v5, {sp(P_WS)} offset:2048 sc1")
    a("s_waitcnt vmcnt(0)")
    chk4(32, True); chk4(36, False)
    poll_tail("q", sleep_q, onfail=restore("q", q_wt) if locq else None)
    ts(2)
    for n in range(4): a(f"v_add_f32 v{32+n}, v{32+n}, v{36+n}")
    swap_op("v_add_f32", [32, 33, 34, 35], [36, 37, 38, 39], 32)
    a("v_cvt_pk_bf16_f32 v32, v32, v33")
    a("v_cvt_pk_bf16_f32 v33, v34, v35")
    a(f"ds_write_b64 v8, v[32:33] offset:{QL}")
    a("s_mov_b64 exec, 1")
    a(f"v_mov_b32 v6, {TRG}")
    a("v_mov_b32 v7, 1")
    a("ds_add_u32 v6, v7 offset:8")
    a("s_mov_b64 exec, -1")
    if locq:
        a("s_cmp_eq_u32 s71, 0")
        a("s_cbranch_scc1 L_nq2")
        a("s_sleep 24")
        q_wt()
        a("L_nq2:")
    a(f"s_cmp_ge_u32 {HW}, 2")
    a("s_cbranch_scc1 L_merge")
    a("s_cmp_lt_u32 s2, 64")
    a("s_cbranch_scc1 L_final")

    def wait_trigger(tag, off=0, cnt=None, slp=3):
        a(f"v_mov_b32 v6, {TRG+off}")
        a(f"s_mov_b32 s67, {spin*8}")
        a(f"L_tw{tag}:")
        if slp: a(f"s_sleep {slp}")
        a("ds_read_b32 v7, v6")
        a("s_sub_u32 s67, s67, 1")
        a(f"s_cbranch_scc1 L_tx{tag}")
        a("s_waitcnt lgkmcnt(0)")
        a("v_readfirstlane_b32 s63, v7")
        a(f"s_cmp_lt_u32 s63, {trgn if cnt is None else cnt}")
        a(f"s_cbranch_scc1 L_tw{tag}")
        a(f"L_tx{tag}:")

    def out_addr(dst, base, cb128, entry, eshift, lsh=6):
        a(f"s_lshl_b32 s63, {cb128}, 3")
        a("v_bfe_u32 v6, v0, 3, 1")
        a(f"v_lshl_add_u32 v{dst}, v6, 5, s63")
        a(f"v_lshl_add_u32 v{dst}, v{VG}, 1, v{dst}")
        a("v_bfe_u32 v6, v0, 2, 1")
        a(f"v_add_u32 v{dst}, v{dst}, v6")
        a(f"v_lshl_add_u32 v{dst}, v{dst}, {eshift}, {entry}")
        a(f"v_lshlrev_b32 v{dst}, {lsh}, v{dst}")
        a("v_and_b32 v6, 3, v0")
        a(f"v_lshl_add_u32 v{dst}, v6, 4, v{dst}")
        a(f"v_add_u32 v{dst}, {base}, v{dst}")

    a("s_sub_u32 s66, s2, 64")
    a("s_add_u32 s63, s66, 192")
    a(f"s_cmp_eq_u32 {HW}, 0")
    a("s_cselect_b32 s66, s63, s66")
    a("s_cmp_ge_u32 s66, 224")
    a("s_cbranch_scc1 L_fin")
    a("s_and_b32 s69, s66, 3")
    a("s_lshr_b32 s66, s66, 2")
    a(f"v_lshlrev_b32 v4, 13, v{VG}")
    a(f"v_lshl_add_u32 v4, v{VC}, 4, v4")
    a(f"s_mov_b32 s40, s{P_WD}"); a(f"s_and_b32 s41, s{P_WD+1}, 0xffff"); a(f"s_mov_b32 s42, {1792*1024}"); a("s_mov_b32 s43, 0x20000")
    a("s_lshl_b32 s56, s66, 15")
    a("s_lshl_b32 s57, s69, 8")
    a("s_add_u32 s56, s56, s57")
    a("s_add_u32 s57, s56, 4096")
    a("s_and_b32 s63, s66, 0xfc")
    a("s_add_u32 s63, s63, 64")
    a("s_lshl_b32 s63, s63, 11")
    a("s_and_b32 s64, s66, 3")
    a("s_lshl_b32 s64, s64, 7")
    a("s_add_u32 s63, s63, s64")
    a(f"v_lshl_add_u32 v5, v{VG}, 10, s63")
    a("v_bfe_u32 v13, v0, 3, 1")
    a("v_lshl_add_u32 v5, v13, 9, v5")
    a("v_and_b32 v8, 7, v0")
    a("v_lshl_add_u32 v5, v8, 4, v5")
    a("v_add_u32 v9, 0x1000, v5")
    a(f"s_lshl_b32 s63, {HW}, 7")
    a(f"v_lshl_add_u32 v10, v{VC}, 3, s63")
    a("v_lshl_add_u32 v11, v13, 6, s63")
    a(f"v_lshl_add_u32 v11, v{VG}, 4, v11")
    BV = 96
    for n in range(32): a(f"v_mov_b32 v{BV+n}, 0")
    out_addr(12, YP, "s69", "s66", 6)
    for _ in range(fdelay): a("s_sleep 60")
    poll_head("f")
    a(f"global_load_dwordx4 {vr(128)}, v5, {sp(P_WS)} sc1")
    a(f"global_load_dwordx4 {vr(132)}, v9, {sp(P_WS)} sc1")
    a("s_waitcnt vmcnt(0)")
    chk4(128, True); chk4(132, False)
    poll_tail("f", 16)
    swap_op("v_add_f32", list(range(128, 136)), list(range(136, 144)), 16)
    swap_op("v_add_f32", list(range(128, 136)), list(range(136, 144)), 32)
    G = [128 + n for n in range(4)]; U = [132 + n for n in range(4)]; Z = [176 + n for n in range(4)]
    rne_pairs(G + U, [184, 185, 186, 187])
    kb_ = 0.7978845608028654
    a(f"s_mov_b32 s63, {f32(-2*LOG2E*kb_*0.044715)}")
    a(f"v_mov_b32 v188, {f32(-2*LOG2E*kb_)}")
    for n in range(4): a(f"v_mul_f32 v{Z[n]}, v{G[n]}, v{G[n]}")
    for n in range(4): a(f"v_fma_f32 v{Z[n]}, v{Z[n]}, s63, v188")
    for n in range(4): a(f"v_mul_f32 v{Z[n]}, v{Z[n]}, v{G[n]}")
    for n in range(4): a(f"v_exp_f32 v{Z[n]}, v{Z[n]}")
    for n in range(4): a(f"v_add_f32 v{Z[n]}, 1.0, v{Z[n]}")
    for n in range(4): a(f"v_rcp_f32 v{Z[n]}, v{Z[n]}")
    for n in range(4): a(f"v_mul_f32 v{G[n]}, v{G[n]}, v{Z[n]}")
    rne_pairs(G, [184, 185])
    for n in range(4): a(f"v_mul_f32 v{G[n]}, v{G[n]}, v{U[n]}")
    for n in range(2): a(f"v_cvt_pk_bf16_f32 v{136+n}, v{G[2*n]}, v{G[2*n+1]}")
    a(f"ds_write_b64 v10, v[136:137] offset:{HB}")
    bvar_reads(BV, 11, HB)
    a("s_waitcnt lgkmcnt(0)")
    if warm:
        a("s_mov_b64 exec, 1")
        a(f"buffer_load_dword v{WR}, v4, s[40:43], s56 offen {wpol}")
        a("s_mov_b64 exec, -1")
    if post & 2:
        a("s_barrier")
        if fsl: a(f"s_sleep {fsl}")
    else: wait_trigger("f")
    for i in range(8):
        a(f"buffer_load_dwordx4 {vr(WR+4*i)}, v4, s[40:43], s{56+(i>>2)} offen offset:{(i&3)*1024} {wpol}")
    if not post & 2: a("s_barrier")
    a("s_waitcnt vmcnt(0)")
    perm4(144, WR, 0)
    for e in range(8):
        if e < 7: perm4(148 + 4 * e, WR, e + 1)
        a(f"v_mfma_f32_16x16x32_bf16 {vr(HACC)}, {vr(144+4*e)}, {vr(BV+4*e)}, {'0' if e == 0 else vr(HACC)}")
    enc(list(range(HACC, HACC + 4)))
    a(f"global_store_dwordx4 v12, {vr(HACC)}, {sp(P_WS)} sc1")
    a("s_branch L_fin")

    a("L_final:")
    a("s_mov_b32 s70, 0x00f000f0"); a("s_mov_b32 s71, 0x00f000f0")
    a("s_mov_b32 s72, 0x0f000f00"); a("s_mov_b32 s73, 0x0f000f00")
    a("s_mov_b32 s74, 0xf000f000"); a("s_mov_b32 s75, 0xf000f000")
    def finish_sum(dst):
        ror("v_add_f32", [20, 21, 22, 23], 4)
        ror("v_add_f32", [20, 21, 22, 23], 8)
        a(f"v_cndmask_b32 v{dst}, v20, v21, s[70:71]")
        a(f"v_cndmask_b32 v{dst}, v{dst}, v22, s[72:73]")
        a(f"v_cndmask_b32 v{dst}, v{dst}, v23, s[74:75]")
        swap_op("v_add_f32", [dst], [24], 16)
        swap_op("v_add_f32", [dst], [24], 32)
        rne(dst, dst)
    def sum_step(u, n):
        a(f"s_waitcnt vmcnt({n-1-u})")
        chk4(64 + 4 * u, u == 0)
        if u == 1:
            a("v_pk_add_f32 v[20:21], v[64:65], v[68:69]"); a("v_pk_add_f32 v[22:23], v[66:67], v[70:71]")
        elif u > 1:
            a(f"v_pk_add_f32 v[20:21], v[20:21], {vr(64+4*u,2)}"); a(f"v_pk_add_f32 v[22:23], v[22:23], {vr(66+4*u,2)}")
    a(f"v_lshlrev_b32 v17, 2, v{VC}")
    a(f"s_cmp_eq_u32 {HW}, 0")
    a("s_cbranch_scc1 L_final_s")
    a("s_lshl_b32 s63, s2, 12")
    a(f"s_add_u32 s63, s63, {YP}")
    a("v_add_u32 v14, s63, v3")
    for n in range(4): a(f"v_and_b32 v{64+n}, {S_FF}, v{VT+n}")
    if b2a: a("s_barrier")
    a("s_barrier")
    if gatef & 1: wait_trigger("y2", 12, 1, 1)
    poll_head("y")
    a("s_mov_b32 s76, exec_hi")
    a("s_mov_b32 exec_hi, 0")
    a("s_cbranch_execz L_yskip")
    a(f"global_load_dwordx4 {vr(64)}, v14, {sp(P_WS)} offset:3072 sc1")
    a("L_yskip:")
    a("s_mov_b32 exec_hi, s76")
    for u in range(3): a(f"global_load_dwordx4 {vr(68+4*u)}, v14, {sp(P_WS)} offset:{u*1024} sc1")
    for u in range(4): sum_step(u, 4)
    poll_tail("y", 2, masked=True)
    finish_sum(12)
    a(f"v_mul_f32 v13, {f32(-LOG2E)}, v12")
    a("v_exp_f32 v13, v13")
    a("v_add_f32 v13, 1.0, v13")
    a("v_rcp_f32 v13, v13")
    a("v_mul_f32 v12, v12, v13")
    rne(12, 12)
    a("v_or_b32 v12, 1, v12")
    a(f"ds_write_b32 v17, v12 offset:{GATE}")
    a("s_branch L_fin")
    a("L_final_s:")
    a("s_lshr_b32 s63, s2, 1")
    a("s_lshl_b32 s63, s63, 5")
    a("s_and_b32 s64, s2, 1")
    a("s_lshl_b32 s64, s64, 2")
    a("s_add_u32 s63, s63, s64")
    a("v_bfe_u32 v10, v0, 2, 2")
    a("v_lshl_add_u32 v10, v10, 3, s63")
    a("v_and_b32 v11, 3, v0")
    a("v_add_lshl_u32 v10, v10, v11, 1")
    a(f"global_load_ushort v11, v10, {sp(P_X)}")
    if spad:
        a("s_lshl_b32 s63, s2, 14")
        a("s_add_u32 s63, s63, 0x200000")
        a("v_lshrrev_b32 v26, 2, v0")
        a("v_lshl_add_u32 v26, v26, 7, s63")
        a("v_and_b32 v27, 3, v0")
        a("v_lshl_add_u32 v26, v27, 4, v26")
        for n in range(1, 4): a(f"v_add_u32 v{26+n}, {0x1000*n}, v26")
    else:
        a("s_lshl_b32 s63, s2, 13")
        a(f"s_add_u32 s63, s63, {SP}")
        a("v_add_u32 v15, s63, v3")
        a("v_add_u32 v16, 0x1000, v15")
    a("s_waitcnt vmcnt(0)")
    a("v_lshlrev_b32 v11, 16, v11")
    if dry:
        a("s_mov_b32 s77, 0"); a("s_mov_b32 s78, 0")
        a("s_branch L_dry_s")
        a("L_real_s:")
        a(f"s_mov_b32 s77, {spin}"); a(f"s_mov_b32 s78, {spin*8}")
    if b2a: a("s_barrier")
    a("s_barrier")
    if dry: a("L_dry_s:")
    if gatef & 2: wait_trigger("s2", 12, 1, 1)
    poll_head("s", "s77" if dry else None)
    for u in range(8):
        if spad: a(f"global_load_dwordx4 {vr(64+4*u)}, v{26+(u>>1)}, {sp(P_WS)} offset:{(u&1)*2048} sc1")
        else: a(f"global_load_dwordx4 {vr(64+4*u)}, v{15+(u>>2)}, {sp(P_WS)} offset:{(u&3)*1024} sc1")
    for u in range(8): sum_step(u, 8)
    poll_tail("s", sleep_s, masked=True)
    ts(4)
    a(f"ds_read_b32 v12, v17 offset:{GATE}")
    finish_sum(13)
    a(f"s_mov_b32 s67, {'s78' if dry else spin*8}")
    a("L_gw:")
    a("s_waitcnt lgkmcnt(0)")
    a("v_and_b32 v14, 1, v12")
    a("v_cmp_ne_u32 vcc, 1, v14")
    a("s_cbranch_vccz L_gg")
    a(f"ds_read_b32 v12, v17 offset:{GATE}")
    a("s_sub_u32 s67, s67, 1")
    a("s_cbranch_scc0 L_gw")
    a("s_waitcnt lgkmcnt(0)")
    a("L_gg:")
    a("v_and_b32 v12, 0xffff0000, v12")
    a("v_mul_f32 v13, v13, v12")
    rne(13, 13)
    a("v_add_f32 v13, v13, v11")
    a("v_cvt_pk_bf16_f32 v13, v13, v13")
    if dry:
        a("s_cmp_eq_u32 s77, 0")
        a("s_cbranch_scc1 L_real_s")
    a("s_mov_b64 exec, 0xffff")
    a(f"global_store_short v10, v13, {sp(P_OUT)} {opol}")
    a("s_cmp_lg_u32 s2, 0")
    a("s_cbranch_scc1 L_fin")
    a("s_mov_b64 exec, 1")
    a(f"v_mov_b32 v10, {EPOCH}")
    a(f"global_store_dword v10, v{VT}, {sp(P_WS)} {opol}")
    a("s_branch L_fin")

    a("L_merge:")
    a(f"s_sub_u32 s70, {HW}, 2")
    a("v_lshrrev_b32 v5, 5, v0")
    a("v_lshl_add_u32 v5, s70, 1, v5")
    a("v_and_b32 v8, 31, v0")
    a("v_lshlrev_b32 v44, 4, v5")
    a(f"v_mul_u32_u24 v45, {ACCH}, v5")
    a("v_lshl_add_u32 v45, v8, 4, v45")
    a(f"s_lshl_b32 s63, {S_KVH}, 2")
    a("v_add_u32 v5, s63, v5")
    a("v_lshrrev_b32 v46, 3, v8")
    a("v_lshl_add_u32 v46, v5, 2, v46")
    a(f"v_lshl_add_u32 v46, v46, 5, {S_IDX}")
    a("v_lshlrev_b32 v46, 8, v46")
    a(f"v_add_u32 v46, {PART}, v46")
    a("v_and_b32 v8, 7, v0")
    a("v_lshl_add_u32 v47, v8, 3, v46")
    a("v_lshl_add_u32 v46, v8, 4, v46")
    a(f"v_mov_b32 v55, v{VT}")
    a(f"s_lshr_b32 s68, {S_IDX}, 2")
    a(f"s_lshl_b32 s64, {S_KVH}, 3")
    a("s_add_u32 s68, s68, s64")
    a("s_lshl_b32 s68, s68, 1")
    a("s_add_u32 s68, s68, s70")
    a(f"s_and_b32 s69, {S_IDX}, 3")
    a(f"s_mov_b32 s40, s{P_WO}"); a(f"s_and_b32 s41, s{P_WO+1}, 0xffff"); a(f"s_mov_b32 s42, {4096*1024}"); a("s_mov_b32 s43, 0x20000")
    a("s_lshl_b32 s56, s68, 15")
    a("s_lshl_b32 s57, s69, 8")
    a("s_add_u32 s56, s56, s57")
    a(f"v_lshlrev_b32 v4, 11, v{VG}")
    a(f"v_lshl_add_u32 v4, v{VC}, 4, v4")
    a("v_lshrrev_b32 v48, 5, v0")
    a("v_lshlrev_b32 v48, 4, v48")
    a("v_and_b32 v8, 12, v0")
    a("v_add_u32 v48, v48, v8")
    a("s_lshl_b32 s63, s68, 5")
    a("v_add_lshl_u32 v48, v48, s63, 8")
    a(f"v_add_u32 v48, {PART}, v48")
    a("v_bfe_u32 v8, v0, 4, 1")
    a("v_and_b32 v9, 3, v0")
    a("v_lshl_add_u32 v8, v8, 2, v9")
    a("v_lshl_add_u32 v49, v8, 3, v48")
    a("v_lshl_add_u32 v48, v8, 4, v48")
    a("s_lshl_b32 s63, s70, 7")
    a(f"s_add_u32 s63, s63, {OB}")
    a("v_lshrrev_b32 v9, 5, v0")
    a("v_lshl_add_u32 v50, v9, 6, s63")
    a("v_lshl_add_u32 v50, v8, 3, v50")
    a("v_bfe_u32 v9, v0, 3, 1")
    a("v_lshl_add_u32 v51, v9, 6, s63")
    a(f"v_lshl_add_u32 v51, v{VG}, 4, v51")
    out_addr(52, 0x200000 if spad else SP, "s69", "s68", 7, 7 if spad else 6)
    a(f"v_mov_b32 v53, {TRG+12}")
    BW, WA = 96, 128
    for n in range(32): a(f"v_mov_b32 v{BW+n}, 0")
    if dry:
        a("s_mov_b32 s77, 0")
        a("s_branch L_dry_m")
        a("L_real_m:")
        a(f"s_mov_b32 s77, {spin}")
    if rank:
        a(f"s_cmp_lg_u32 {HW}, 2")
        a("s_cbranch_scc1 L_norank")
        a(f"s_mul_i32 s63, {'s2' if rpriv else S_KVH}, {16*RSTR}")
        a(f"s_add_u32 s63, s63, {RANK}")
        a("v_and_b32 v8, 31, v0")
        a("v_lshl_add_u32 v8, v8, 2, s63")
        a(f"s_lshl_b32 s64, {S_IDX}, 2")
        a("s_add_u32 s63, s63, s64")
        a("v_mov_b32 v9, s63")
        a(f"v_mov_b32 v6, {TRG}")
        a("s_mov_b32 s72, 2")
        a(f"s_mov_b32 s67, {spin*8}")
        a("L_rk:")
        a("s_sleep 3")
        a("ds_read_b32 v7, v6")
        a("s_sub_u32 s67, s67, 1")
        a("s_cbranch_scc1 L_norank")
        a("s_waitcnt lgkmcnt(0)")
        a("v_readfirstlane_b32 s63, v7")
        a("s_cmp_lt_u32 s63, s72")
        a("s_cbranch_scc1 L_rk")
        if 'l' in rop: a(f"global_load_dword v10, v8, {sp(P_WS)} {rpol}")
        if 's' in rop:
            a("s_mov_b64 exec, 1")
            a(f"global_store_dword v9, v{VT}, {sp(P_WS)} {rpol}")
            a("s_mov_b64 exec, -1")
        if 'S' in rop:
            a("s_mov_b32 exec_hi, 0")
            a(f"global_store_dword v8, v{VT}, {sp(P_WS)} {rpol}")
            a("s_mov_b64 exec, -1")
        if 'm' in rop:
            a("v_readfirstlane_b32 s74, v8")
            a(f"s_load_dword s75, {sp(P_WS)}, s74 glc")
            a("s_waitcnt lgkmcnt(0)")
        a(f"v_add_u32 v8, {rs}, v8")
        a(f"v_add_u32 v9, {rs}, v9")
        a(f"s_add_u32 s72, s72, {4*rstep}")
        a("s_waitcnt vmcnt(1)" if rop == 'ls' else "s_waitcnt vmcnt(0)")
        a(f"v_cmp_eq_u32 vcc, v10, v{VT}")
        a("s_bcnt1_i32_b32 s63, vcc_lo")
        a("s_mov_b32 s64, 0")
        a(f"s_cmp_lt_u32 s63, {R0}"); a("s_cselect_b32 s64, 3, s64")
        a(f"s_cmp_ge_u32 s63, {R1}"); a("s_cselect_b32 s64, 1, s64")
        a(f"s_cmp_ge_u32 s63, {R2}"); a("s_cselect_b32 s64, 2, s64")
        a("v_mov_b32 v7, s64")
        a("ds_write_b32 v6, v7 offset:4")
        a("s_cmp_lt_u32 s72, 44")
        a("s_cbranch_scc1 L_rk")
        a("L_norank:")
    def wo_loads():
        for r in range(4):
            for hi in range(2):
                a(f"buffer_load_dwordx4 {vr(WR+4*(hi*4+r))}, v4, s[40:43], s56 offen offset:{hi*1024} {wpol}")
            if r < 3: a("s_add_u32 s56, s56, 8192")
    if warm:
        a("s_mov_b64 exec, 1")
        a(f"buffer_load_dword v{WR}, v4, s[40:43], s56 offen {wpol}")
        a("s_mov_b64 exec, -1")
    if not post & 5:
        wait_trigger("m")
        wo_loads()
    if b2a:
        a("s_barrier")
        a(f"ds_read_b128 v[8:11], v44 offset:{MLO}")
        a(f"ds_read_b128 v[12:15], v44 offset:{MLO+64}")
        a("s_waitcnt lgkmcnt(1)")
        a("v_max3_f32 v34, v8, v9, v10")
        a("v_max_f32 v34, v34, v11")
        for w in range(4): a(f"v_sub_f32 v{8+w}, v{8+w}, v34")
        for w in range(4): a(f"v_exp_f32 v{8+w}, v{8+w}")
        a("s_waitcnt lgkmcnt(0)")
        a("v_mul_f32 v35, v8, v12")
        for w in range(1, 4): a(f"v_fmac_f32 v35, v{8+w}, v{12+w}")
        a("v_rcp_f32 v36, v35")
        a("v_log_f32 v54, v35")
        for w in range(4): a(f"v_mul_f32 v{8+w}, v{8+w}, v36")
        a("v_add_f32 v54, v54, v34")
        a(f"global_store_dwordx2 v47, v[54:55], {sp(P_WS)} offset:128 sc1")
        a("s_barrier")
        ts(2)
        for w in range(4): a(f"ds_read_b128 {vr(16+4*w)}, v45 offset:{ACC+w*ACCW}")
        for w in range(4):
            a(f"s_waitcnt lgkmcnt({3-w})")
            for n in range(4):
                a(f"v_mul_f32 v{56+n}, v8, v{16+n}" if w == 0 else f"v_fmac_f32 v{56+n}, v{8+w}, v{16+4*w+n}")
        enc([56, 57, 58, 59])
    else:
        a("s_barrier")
        ts(2)
        if dry: a("L_dry_m:")
        a(f"ds_read_b128 v[8:11], v44 offset:{MLO}")
        a(f"ds_read_b128 v[12:15], v44 offset:{MLO+64}")
        for w in range(4): a(f"ds_read_b128 {vr(16+4*w)}, v45 offset:{ACC+w*ACCW}")
        if post & 4: wo_loads()
        a("s_waitcnt lgkmcnt(5)")
        a("v_max3_f32 v34, v8, v9, v10")
        a("v_max_f32 v34, v34, v11")
        for w in range(4): a(f"v_sub_f32 v{8+w}, v{8+w}, v34")
        for w in range(4): a(f"v_exp_f32 v{8+w}, v{8+w}")
        a("s_waitcnt lgkmcnt(4)")
        a("v_mul_f32 v35, v8, v12")
        for w in range(1, 4): a(f"v_fmac_f32 v35, v{8+w}, v{12+w}")
        a("v_rcp_f32 v36, v35")
        a("v_log_f32 v54, v35")
        a("s_waitcnt lgkmcnt(0)")
        for n in range(4): a(f"v_mul_f32 v{56+n}, v8, v{16+n}")
        for w in range(1, 4):
            for n in range(4): a(f"v_fmac_f32 v{56+n}, v{8+w}, v{16+4*w+n}")
        a("v_add_f32 v54, v54, v34")
        for n in range(4): a(f"v_mul_f32 v{56+n}, v{56+n}, v36")
        enc([56, 57, 58, 59])
    def part_st(pol):
        a(f"global_store_dwordx4 v46, v[56:59], {sp(P_WS)} {pol}")
        if not b2a: a(f"global_store_dwordx2 v47, v[54:55], {sp(P_WS)} offset:128 {pol}")
    a("s_mov_b32 s71, 0")
    if dry:
        a("s_cmp_eq_u32 s77, 0")
        a("s_cbranch_scc1 L_dry_m2")
    part_st("" if loc1 else "sc1")
    if loc1: a(f"s_mov_b32 s71, {nre}")
    ts(3)
    if post & 1: wo_loads()
    def c_loads():
        for u in range(4): a(f"global_load_dwordx2 {vr(8+2*u,2)}, v49, {sp(P_WS)} offset:{128+u*256} sc1")
        for u in range(4): a(f"global_load_dwordx4 {vr(16+4*u)}, v48, {sp(P_WS)} offset:{u*256} sc1")
    if peel:
        c_loads()
        a("s_waitcnt vmcnt(8)" if post & 1 else "s_waitcnt vmcnt(10)")
        for e in range(8): perm4(WA + 4 * e, WR, e)
        a(f"s_mov_b32 s67, {spin}")
        a("s_branch L_cb")
        a("L_pc:")
        c_loads()
        a("L_cb:")
    else:
        a("s_waitcnt vmcnt(0)" if post & 1 else "s_waitcnt vmcnt(2)")
        for e in range(8): perm4(WA + 4 * e, WR, e)
        poll_head("c")
        c_loads()
    a("s_waitcnt vmcnt(4)")
    a(f"v_xor_b32 v5, v9, v{VT}")
    for u in range(1, 4): a(f"v_bitop3_b32 v5, v5, v{9+2*u}, v{VT} bitop3:0xf6")
    a("v_max3_f32 v34, v8, v10, v12")
    a("v_max_f32 v34, v34, v14")
    for u in range(4): a(f"v_sub_f32 v{8+2*u}, v{8+2*u}, v34")
    for u in range(4): a(f"v_exp_f32 v{8+2*u}, v{8+2*u}")
    a("v_add_f32 v36, v8, v10")
    a("v_add_f32 v35, v12, v14")
    a("v_add_f32 v36, v36, v35")
    for u in range(4):
        a(f"s_waitcnt vmcnt({3-u})")
        chk4(16 + 4 * u, u == 0)
        for n in range(4):
            if u == 0: a(f"v_mul_f32 v{40+n}, v8, v{16+n}")
            else: a(f"v_fmac_f32 v{40+n}, v{8+2*u}, v{16+4*u+n}")
    poll_tail("c", sleep_c, full=5, masked=True, onfail=restore("c", lambda: part_st("sc1")) if loc1 else None)
    ts(4)
    if gatef: a("ds_write_b32 v53, v53")
    a(f"v_max_f32_dpp v35, v34, v34 row_ror:4 {DPPM}")
    ror("v_max_f32", [35], 8)
    a("v_sub_f32 v34, v34, v35")
    a("v_exp_f32 v34, v34")
    a("v_mul_f32 v36, v36, v34")
    for n in range(4): a(f"v_mul_f32 v{40+n}, v{40+n}, v34")
    ror("v_add_f32", [36, 40, 41, 42, 43], 4)
    ror("v_add_f32", [36, 40, 41, 42, 43], 8)
    a("v_rcp_f32 v36, v36")
    for n in range(4): a(f"v_mul_f32 v{40+n}, v{40+n}, v36")
    a("v_cvt_pk_bf16_f32 v40, v40, v41")
    a("v_cvt_pk_bf16_f32 v41, v42, v43")
    a("ds_write_b64 v50, v[40:41]")
    bvar_reads(BW, 51, 0)
    for e in range(8):
        a(f"s_waitcnt lgkmcnt({7-e})")
        a(f"v_mfma_f32_16x16x32_bf16 v[16:19], {vr(WA+4*e)}, {vr(BW+4*e)}, {'0' if e == 0 else 'v[16:19]'}")
    enc([16, 17, 18, 19])
    if dry:
        a("s_cmp_eq_u32 s77, 0")
        a("s_cbranch_scc1 L_real_m")
    a(f"global_store_dwordx4 v52, v[16:19], {sp(P_WS)} sc1")
    if loc1:
        a("s_cmp_eq_u32 s71, 0")
        a("s_cbranch_scc1 L_fin")
        part_st("sc1")
    a("L_fin:")
    stamp()
    if padto:
        a("s_cmp_lg_u32 s2, 0")
        a("s_cbranch_scc1 L_exit")
        a(f"s_cmp_lg_u32 {S_WAVE}, 4")
        a("s_cbranch_scc1 L_exit")
        a("L_padto:")
        a("s_sleep 1")
        a("s_memrealtime s[92:93]")
        a("s_waitcnt lgkmcnt(0)")
        a("s_sub_u32 s92, s92, s80")
        a(f"s_cmp_lt_u32 s92, {padto}")
        a("s_cbranch_scc1 L_padto")
    a("L_exit:")
    a("s_endpgm")
    body, n = fix_hazards(a.L)
    body += ['.section .rodata,"a"', ".p2align 6", f".amdhsa_kernel {NAME}_kernel",
             "  .amdhsa_next_free_vgpr 256", "  .amdhsa_next_free_sgpr 100", "  .amdhsa_accum_offset 256",
             "  .amdhsa_group_segment_fixed_size 0", "  .amdhsa_kernarg_size 96", "  .amdhsa_user_sgpr_count 2",
             "  .amdhsa_user_sgpr_kernarg_segment_ptr 1", "  .amdhsa_system_sgpr_workgroup_id_x 1",
             "  .amdhsa_float_denorm_mode_32 3", ".end_amdhsa_kernel"]
    open(path, "w").write("\n".join(body) + "\n")
    return n

if __name__ == "__main__":
    kw = {}
    for t in sys.argv[2:]:
        k, v = t.split("=")
        try: v = int(v)
        except ValueError: v = v.replace("+", " ")
        kw[k] = v
    print("nops inserted:", gen(sys.argv[1], **kw))
```

```python
import sys, re
import gen12
NAME = gen12.NAME
kw = {}
for t in sys.argv[1:]:
    k, v = t.split("=")
    try: v = int(v)
    except ValueError: pass
    kw[k] = v
gen12.gen("final_body.s", **kw)
body = open("final_body.s").read().split("\n")
ref = open(f"../cdna_kernels/{NAME}.s.ref").read().split("\n")
hdr = [l for l in ref if l.startswith(";") and "@launch" not in l and "Override" not in l and "grid=ceil" not in l]
doc = """;
; Fused decode step, one launch, 256 workgroups x 8 waves (one workgroup per CU, all co-resident).
;   workgroup = (batch b, kv head, split j): 2048 keys of K/V.
;   waves 0-3 (streamers): stream K/V tiles of 32 keys straight into registers (nt loads, short counted
;     queue), QK^T and PV on MFMA 16x16x32 bf16, online softmax with the running true max; the scores
;     are rounded to bf16 twice exactly where the reference rounds them.
;   waves 4-7 (helpers): layernorm, q / gate / up projections (split over workgroups), GEGLU + down
;     projection, merge of the 4 streamers, cross-split combine + output projection, final gate/residual.
; Cross-workgroup hand-offs go through d_ws with write-through (sc1) stores and sc1 loads; every 16-byte
;   granule carries a launch tag in the low mantissa byte of each dword. The tag is derived from an epoch
;   word found in d_ws at entry (only used to tell this launch's hand-offs from older ones) and the new
;   epoch is written at the end. All waits are bounded polls; s_sleep is only poll back-off.
; Generated by my own script (dev/gen12.py).""".split("\n")
out = hdr + doc + body
open(f"../cdna_kernels/{NAME}.s", "w").write("\n".join(out))
```
